```python
import torch

def _softmax(x, axis=-1):
    return torch.softmax(x, dim=axis)
def _gelu(x):
    return torch.nn.functional.gelu(x, approximate="tanh")
def _silu(x):
    return torch.nn.functional.silu(x)
def _sigmoid(x):
    return torch.sigmoid(x)
def _layernorm(x, axis=-1, eps=1e-5):
    m = x.mean(dim=axis, keepdim=True)
    v = x.var(dim=axis, keepdim=True, unbiased=False)
    return (x - m) / torch.sqrt(v + eps)
def _scatter_add(tgt, idx, src, axis=0):
    return tgt.clone().index_add_(axis, idx, src)
def _segment_sum(src, seg, n):
    out = torch.zeros((n,) + src.shape[1:], dtype=src.dtype)
    return out.index_add_(0, seg, src)
def _pad(x, pw):
    flat = tuple(v for pair in reversed(pw) for v in pair)
    return torch.nn.functional.pad(x, flat)

kernel_name = 'standalone__mha_softmax__near_ridge'

def setup_inputs():

    _w = (lambda a: (lambda t: t.to(torch.bfloat16) if t.is_floating_point() else t)(torch.as_tensor(a)))
    B, H, Sq, Sk, D = 8, 32, 256, 2048, 128
    return {
        "q": _w((lambda *s: torch.randn(*s, dtype=torch.bfloat16) * 0.8)(B, H, Sq, D)),
        "k": _w((lambda *s: torch.randn(*s, dtype=torch.bfloat16) * 0.8)(B, H, Sk, D)),
        "v": _w((lambda *s: torch.randn(*s, dtype=torch.bfloat16) * 0.05)(B, H, Sk, D)),
    }

def reference(q, k, v):
    scale = q.shape[-1] ** -0.5
    scores = torch.einsum("bhqd,bhkd->bhqk", q, k) * scale
    p = _softmax(scores, axis=-1)
    return torch.einsum("bhqk,bhkd->bhqd", p, v)
```

```python
NAME = "standalone__mha_softmax__near_ridge"
HEADER = """; Kernarg layout for this problem (48 bytes, ptrs only, base s[0:1]):
"""
def wrap(body, grid=256, block=256, lds=0, nvgpr=512, accum=256, nsgpr=102, extra_comment="", extra_desc=""):
    return (HEADER + extra_comment +
f"; @launch grid=({grid},1,1) block=({block},1,1) lds={lds}\n"
f""".amdgcn_target "amdgcn-amd-amdhsa--gfx950"
.text
.globl {NAME}_kernel
.p2align 8
.type {NAME}_kernel,@function
{NAME}_kernel:
{body}
.section .rodata,"a"
.p2align 6
.amdhsa_kernel {NAME}_kernel
  .amdhsa_next_free_vgpr {nvgpr}
  .amdhsa_next_free_sgpr {nsgpr}
  .amdhsa_accum_offset {accum}
  .amdhsa_group_segment_fixed_size 0
  .amdhsa_kernarg_size 48
  .amdhsa_user_sgpr_count 2
  .amdhsa_user_sgpr_kernarg_segment_ptr 1
  .amdhsa_system_sgpr_workgroup_id_x 1
{extra_desc}.end_amdhsa_kernel
""")

STAMP_BASE = 70
def stamp(i):
    b = STAMP_BASE + 4 * i
    return f"s_memrealtime s[{b}:{b+1}]\ns_memtime s[{b+2}:{b+3}]\n"

def stamp_flush(n, s_wave, vt0=0, srd=60):
    o = []
    o.append(f"s_load_dwordx2 s[{srd+4}:{srd+5}], s[0:1], 40")
    o.append("s_waitcnt lgkmcnt(0)")
    o.append(f"s_mov_b32 s{srd}, s{srd+4}")
    o.append(f"s_mov_b32 s{srd+1}, s{srd+5}")
    o.append(f"s_mov_b32 s{srd+2}, 0x100000")
    o.append(f"s_mov_b32 s{srd+3}, 0x20000")
    o.append(f"s_lshl_b32 s{srd+6}, s2, 2")
    o.append(f"s_add_u32 s{srd+6}, s{srd+6}, s{s_wave}")
    o.append(f"s_mul_i32 s{srd+6}, s{srd+6}, {n*16}")
    o.append("s_mov_b64 exec, 1")
    o.append(f"v_mov_b32 v{vt0+4}, s{srd+6}")
    for i in range(n):
        b = STAMP_BASE + 4 * i
        for j in range(4):
            o.append(f"v_mov_b32 v{vt0+j}, s{b+j}")
        o.append(f"buffer_store_dwordx4 v[{vt0}:{vt0+3}], v{vt0+4}, s[{srd}:{srd+3}], 0 offen offset:{16*i}")
        o.append("s_waitcnt vmcnt(0)")
    return "\n".join(o) + "\n"
```

```python
import re

TRANS = ("v_exp_f32", "v_log_f32", "v_rcp_f32", "v_rsq_f32", "v_sqrt_f32")


def regs_of(op):
    op = op.strip().lstrip("-").strip("|")
    m = re.fullmatch(r"([vas])\[(\d+):(\d+)\]", op)
    if m:
        return [f"{m.group(1)}{i}" for i in range(int(m.group(2)), int(m.group(3)) + 1)]
    m = re.fullmatch(r"([vas])(\d+)", op)
    if m:
        return [op]
    if op in ("vcc", "exec", "m0"):
        return [op]
    return []


class I:
    def __init__(self, text):
        self.text = text
        t = text.split(";")[0].strip()
        self.t = t
        self.mn = t.split()[0] if t else ""
        rest = t[len(self.mn):].strip()
        ops = [o.strip() for o in rest.split(",")] if rest else []
        if ops:
            ops[-1] = ops[-1].split()[0] if ops[-1] else ops[-1]
        self.ops = ops
        mn = self.mn
        self.kind = "other"
        self.w = []
        self.r = []
        self.srcC = []
        self.srcAB = []
        self.store_data = []
        if mn.endswith(":") or mn == "" or mn.startswith("."):
            self.kind = "label"
        elif mn.startswith("v_mfma"):
            self.kind = "mfma"
            self.w = regs_of(ops[0])
            self.srcAB = regs_of(ops[1]) + regs_of(ops[2])
            self.srcC = regs_of(ops[3])
            self.r = self.srcAB + self.srcC
            self.passes = 8 if "32x32x16" in mn else (4 if "16x16x32" in mn else 2)
        elif mn.startswith("v_"):
            self.kind = "valu"
            if mn.startswith("v_permlane32_swap") or mn.startswith("v_permlane16_swap"):
                self.w = regs_of(ops[0]) + regs_of(ops[1])
                self.r = list(self.w)
            elif mn in ("v_nop",):
                pass
            else:
                self.w = regs_of(ops[0])
                for o in ops[1:]:
                    self.r += regs_of(o)
                if mn.startswith("v_fmac") or mn.startswith("v_dot2c"):
                    self.r += self.w
                if mn.startswith("v_cndmask") and len(ops) == 3:
                    self.r.append("vcc")
        elif mn.startswith("ds_read"):
            self.kind = "ds"
            self.w = regs_of(ops[0])
            self.r = regs_of(ops[1])
        elif mn.startswith("ds_write"):
            self.kind = "ds"
            for o in ops:
                self.r += regs_of(o)
        elif mn.startswith("buffer_load") or mn.startswith("global_load"):
            self.kind = "vmem"
            if t.endswith(" lds"):
                for o in ops:
                    self.r += regs_of(o)
                self.r.append("m0")
                self.dma = True
            else:
                self.w = regs_of(ops[0])
                for o in ops[1:]:
                    self.r += regs_of(o)
        elif mn.startswith("buffer_store") or mn.startswith("global_store"):
            self.kind = "vmem"
            for o in ops:
                self.r += regs_of(o)
            if mn.endswith("x4") or mn.endswith("x3"):
                self.store_data = regs_of(ops[0])
        elif mn.startswith("s_load") or mn.startswith("s_mem"):
            self.kind = "smem"
            self.w = regs_of(ops[0])
        elif mn == "s_nop":
            self.kind = "nop"
        elif mn == "s_waitcnt":
            self.kind = "wait"
        elif mn.startswith("s_cbranch") or mn in ("s_branch", "s_endpgm", "s_barrier", "s_setprio", "s_setpc_b64", "s_sleep"):
            self.kind = "ctl"
        elif mn.startswith("s_cmp"):
            self.kind = "salu"
            for o in ops:
                self.r += regs_of(o)
        elif mn.startswith("s_"):
            self.kind = "salu"
            self.w = regs_of(ops[0])
            for o in ops[1:]:
                self.r += regs_of(o)
        self.states = 0 if self.kind == "label" else 1
        if self.kind == "nop":
            self.states = int(ops[0]) + 1


def check(lines, name=""):
    ins = [I(x) for x in lines]
    ins = [i for i in ins if i.kind != "label"]
    probs = []
    for j, c in enumerate(ins):
        dist = 0
        for i in range(j - 1, max(-1, j - 40), -1):
            p = ins[i]
            need = 0
            pw, cr, cw = set(p.w), set(c.r), set(c.w)
            if p.kind == "valu":
                vw = {x for x in pw if x[0] in "va" and x != "vcc"}
                sw = {x for x in pw if x[0] == "s" or x == "vcc"}
                if c.kind == "mfma" and vw & cr:
                    need = max(need, 2)
                if c.mn.startswith("v_permlane") and vw & cr:
                    need = max(need, 2)
                if c.mn.startswith("v_readfirstlane") or c.mn.startswith("v_readlane"):
                    if vw & cr:
                        need = max(need, 1)
                if p.mn.replace("_e32", "").replace("_e64", "") in TRANS and c.kind in ("valu",) and vw & cr:
                    if c.mn.replace("_e32", "").replace("_e64", "") not in TRANS:
                        need = max(need, 1)
                if sw & cr and c.kind == "vmem":
                    need = max(need, 5)
                if sw & cr and c.kind == "valu":
                    need = max(need, 2)
                if "sdwa" in p.mn and c.kind == "valu" and vw & (cr | cw):
                    need = max(need, 1)
            if p.kind == "mfma":
                n = {2: 5, 4: 8, 8: 12}[p.passes]
                if c.kind in ("valu",) and pw & (cr | cw):
                    need = max(need, n)
                if c.kind in ("ds", "vmem") and pw & (cr | cw):
                    need = max(need, n)
                if c.kind == "mfma":
                    if pw & set(c.srcAB):
                        need = max(need, n)
                    if pw & set(c.srcC):
                        if not (p.w == c.srcC and p.passes == c.passes):
                            need = max(need, {2: 4, 4: 6, 8: 10}[p.passes])
                        elif p.passes == 2:
                            need = max(need, 2)
                if c.kind == "valu" and set(p.srcC) & cw:
                    need = max(need, {2: 1, 4: 3, 8: 7}[p.passes])
            if p.kind == "salu" and "m0" in pw and getattr(c, "dma", False):
                need = max(need, 1)
            if p.store_data and set(p.store_data) & cw:
                need = max(need, 2)
            if need > dist:
                probs.append(f"{name}: need {need} have {dist}: [{p.t}] -> [{c.t}]")
            dist += p.states
            if dist >= 20:
                break
    pend_l = []
    pend_v = []
    for c in ins:
        if c.kind == "wait":
            m = re.search(r"lgkmcnt\((\d+)\)", c.t)
            if m:
                n = int(m.group(1))
                if n > 15:
                    probs.append(f"{name}: lgkmcnt>15 {c.t}")
                if any(k == "smem" for _, _, k in pend_l) and n != 0:
                    pass
                else:
                    pend_l = pend_l[len(pend_l) - n:] if n and n < len(pend_l) else ([] if n == 0 else pend_l)
            m = re.search(r"vmcnt\((\d+)\)", c.t)
            if m:
                n = int(m.group(1))
                if n > 63:
                    probs.append(f"{name}: vmcnt>63 {c.t}")
                pend_v = pend_v[len(pend_v) - n:] if n and n < len(pend_v) else ([] if n == 0 else pend_v)
            continue
        touched = set(c.r) | set(c.w)
        for regs, t, k in pend_l + pend_v:
            if regs & touched:
                probs.append(f"{name}: unwaited load [{t}] -> [{c.t}]")
        if c.kind in ("ds", "smem"):
            pend_l.append((set(c.w), c.t, c.kind))
        if c.kind == "vmem":
            pend_v.append((set(c.w), c.t, c.kind))
    return probs
```

```python
import sys, struct, math
from asmlib import *
import hazard


def f2u(x):
    return struct.unpack("<I", struct.pack("<f", x))[0]


DEFAULTS = dict(
    nt="nt",
    stnt="",
    stamps=False,
    nodma=False,
    nobar=False,
    force_slow=False,
    warmcode=False,
    dma_gaps=(1, 3, 5, 7),
    bar_gap=8,
)

L0, L1 = 28, 29
KADDR = 32
VADDR = 40
KDA, KDB, VDA = 44, 45, 46
LANE = 47
P = (48, 56)
NEGM = (64, 80)
S = (96, 112)
O = (128, 192)
AQ = (0, 32)
AK = 64
AV = 96
SRDQ, SRDK, SRDV, SRDO = 16, 20, 24, 28
S_CNT, S_OFF, S_C = 32, 33, 34
S_WB = 36
M0K, M0V = 40, 48
VBASE = 65536
THRESH = 2.0 ** 30


def vr(a, n):
    return f"v[{a}:{a+n-1}]"


def ar(a, n):
    return f"a[{a}:{a+n-1}]"


def sr(a, n):
    return f"s[{a}:{a+n-1}]"


class Gen:
    def __init__(self, **kw):
        self.c = dict(DEFAULTS)
        self.c.update(kw)
        self.out = []

    def A(self, s):
        for l in s.split("\n"):
            if l.strip():
                self.out.append(l.strip())

    def dma(self, voff, srd, soff, imm):
        nt = self.c["nt"]
        o = f" offset:{imm}" if imm else ""
        return f"buffer_load_dwordx4 v{voff}, {sr(srd,4)}, {soff} offen{o} {nt} lds".replace("  ", " ")

    def group(self, kslot, vslot):
        so = f"s{S_OFF}"
        return [
            [f"s_mov_b32 m0, s{M0K+kslot}"],
            [self.dma(KDA, SRDK, so, 0)],
            [self.dma(KDB, SRDK, so, 1024)],
            [f"s_mov_b32 m0, s{M0V+vslot}"],
            [self.dma(VDA, SRDV, so, 0)],
            [self.dma(VDA, SRDV, so, 1024)],
            [f"s_add_u32 s{S_OFF}, s{S_OFF}, 0x2000"],
        ]

    def group_now(self, kslot, vslot):
        g = self.group(kslot, vslot)
        self.A(g[0][0]); self.A("s_nop 0"); self.A(g[1][0]); self.A(g[2][0])
        self.A(g[3][0]); self.A("s_nop 0"); self.A(g[4][0]); self.A(g[5][0]); self.A(g[6][0])

    def mf_qk(self, qb, s, czero=False):
        c = ("0" if czero else vr(NEGM[qb], 16)) if s == 0 else vr(S[qb], 16)
        return f"v_mfma_f32_32x32x16_bf16 {vr(S[qb],16)}, {ar(AK+4*s,4)}, {ar(AQ[qb]+4*s,4)}, {c}"

    def mf_pv(self, qb, f):
        t, b = f // 4, f % 4
        o = vr(O[qb] + 16 * b, 16)
        return f"v_mfma_f32_32x32x16_bf16 {o}, {ar(AV+4*f,4)}, {vr(P[qb]+4*t,4)}, {o}"

    def rd_k(self, s, slot):
        return f"ds_read_b128 {ar(AK+4*s,4)}, v{KADDR+s} offset:{slot*8192}"

    def rd_v(self, x, slot):
        f, u = x // 2, x % 2
        t, b = f // 4, f % 4
        return f"ds_read_b64_tr_b16 {ar(AV+4*f+2*u,2)}, v{VADDR+b} offset:{slot*8192+t*4096+u*2048}"

    def sm_exp(self, qb, e):
        return f"v_exp_f32 v{S[qb]+e}, v{S[qb]+e}"

    def sm_add(self, qb, e):
        l = (L0, L1)[qb]
        return f"v_add_f32 v{l}, v{l}, v{S[qb]+e}"

    def sm_cvt(self, qb, e):
        return f"v_cvt_pk_bf16_f32 v{P[qb]+e//2}, v{S[qb]+e-1}, v{S[qb]+e}"

    def softmax_fill(self, g):
        r = []
        def elem(gap):
            gap %= 32
            if 10 <= gap <= 25:
                return (0, gap - 10, False)
            if gap >= 26:
                return (1, gap - 26, False)
            return (1, gap + 6, True)
        qb, e, prev = elem(g - 1)
        if g == 0:
            prev = True
        r.append((self.sm_add(qb, e), prev))
        if e % 2 == 1:
            r.append((self.sm_cvt(qb, e), prev))
        qb, e, prev = elem(g)
        r.append((self.sm_exp(qb, e), prev))
        return r

    def step(self, pos, first=False):
        c = self.c
        A = self.A
        grp = self.group((pos + 7) % 8, (pos + 6) % 8)
        dg = c["dma_gaps"]
        for g in range(32):
            w = {24: 5, 28: 3, 0: 4, 2: 3, 4: 1, 6: 0}.get(g)
            if first and g < 24:
                w = None
            if w is not None:
                A(f"s_waitcnt lgkmcnt({w})")
            if g < 8:
                m = self.mf_qk(0, g)
            elif g < 16:
                m = self.mf_pv(1, g - 8)
            elif g < 24:
                m = self.mf_qk(1, g - 16)
            else:
                m = self.mf_pv(0, g - 24)
            if not (first and g < 24):
                A(m)
            fill = [t for (t, prev) in self.softmax_fill(g) if not (first and prev)]
            pre = []
            post = []
            if g == dg[0] - 1 and not c["nodma"]:
                post.append(grp[0][0])
            if g == dg[2] - 1 and not c["nodma"]:
                post.append(grp[3][0])
            for k, gi in ((0, 1), (1, 2), (2, 4), (3, 5)):
                if g == dg[k] and not c["nodma"]:
                    pre.append(grp[gi][0])
            if g == dg[3] and not c["nodma"]:
                post.append(grp[6][0])
            if g == c["bar_gap"]:
                if not c["nodma"]:
                    post.append("s_waitcnt vmcnt(24)")
                if not c["nobar"]:
                    post.append("s_barrier")
            if 9 <= g <= 24:
                pre.append(self.rd_v(g - 9, pos))
            elif g >= 25:
                pre.append(self.rd_k(g - 25, (pos + 1) % 8))
            elif g == 0 and not first:
                pre.append(self.rd_k(7, pos))
            if first and g < 24 and fill and fill[0].startswith("v_add") and not pre:
                A("s_nop 0")
            if first and g in (dg[0], dg[2]):
                A("s_nop 0")
            for t in pre + fill + post:
                A(t)

    def rowmax(self, qb, dst, tmp):
        A = self.A
        s = S[qb]
        A(f"v_max3_f32 v{dst}, v{s}, v{s+1}, v{s+2}")
        for i in range(3, 15, 2):
            A(f"v_max3_f32 v{dst}, v{dst}, v{s+i}, v{s+i+1}")
        A(f"v_max_f32 v{dst}, v{dst}, v{s+15}")
        A(f"v_mov_b32 v{tmp}, v{dst}")
        A("s_nop 1")
        A(f"v_permlane32_swap_b32 v{dst}, v{tmp}")
        A(f"v_max_f32 v{dst}, v{dst}, v{tmp}")

    def scale_q(self, qb, raw):
        r = []
        for i in range(32):
            t = 2 * (i % 4)
            r.append(f"v_lshlrev_b32 v{t}, 16, v{raw+i}")
            r.append(f"v_and_b32 v{t+1}, 0xffff0000, v{raw+i}")
            r.append(f"v_pk_mul_f32 {vr(t,2)}, {vr(t,2)}, {sr(S_C,2)}")
            r.append(f"v_cvt_pk_bf16_f32 v{8+i%4}, v{t}, v{t+1}")
            r.append(f"v_accvgpr_write_b32 a{AQ[qb]+i}, v{8+i%4}")
        return r

    def prologue(self):
        c = self.c
        A = self.A
        A("s_cmp_ge_u32 s2, 256\ns_cbranch_scc1 L_end")
        if c["stamps"]:
            A(stamp(0))
        A("s_load_dwordx4 s[4:7], s[0:1], 0\ns_load_dwordx4 s[8:11], s[0:1], 16")
        A(f"v_lshrrev_b32 v1, 6, v0\nv_and_b32 v{LANE}, 63, v0")
        A("v_readfirstlane_b32 s3, v1")
        A(f"v_lshrrev_b32 v2, 4, v{LANE}")
        A(f"v_and_b32 v3, 15, v{LANE}")
        A("v_xor_b32 v4, v3, v2\nv_lshlrev_b32 v4, 4, v4\nv_lshl_add_u32 v12, v2, 8, v4")
        for j in range(1, 4):
            A(f"v_xor_b32 v{12+j}, {j<<6}, v12")
        A(f"s_lshl_b32 s{S_WB}, s3, 11")
        for k in range(8):
            A(f"s_add_u32 s{M0K+k}, s{S_WB}, {k*8192}")
            A(f"s_add_u32 s{M0V+k}, s{S_WB}, {VBASE+k*8192}")
        A("s_and_b32 s12, s3, 1\ns_lshl_b32 s12, s12, 7")
        A(f"v_xor_b32 v16, s12, v12\nv_add_u32 v16, s{S_WB}, v16\nv_xor_b32 v17, 64, v16")
        A(f"v_add_u32 v{KDA}, 0x2000, v16\nv_add_u32 v{KDB}, 0x2000, v17")
        A(f"v_lshlrev_b32 v4, 2, v2\nv_xor_b32 v4, v3, v4\nv_lshlrev_b32 v4, 4, v4\nv_lshl_add_u32 v4, v2, 8, v4\nv_add_u32 v{VDA}, s{S_WB}, v4")
        A("s_lshl_b32 s12, s2, 16\ns_lshl_b32 s13, s2, 19")
        A("s_lshl_b32 s37, s3, 14")
        A("s_waitcnt lgkmcnt(0)")
        def srd(d, lo, off, size):
            A(f"s_add_u32 s{d}, s{lo}, s{off}\ns_addc_u32 s{d+1}, s{lo+1}, 0\ns_mov_b32 s{d+2}, {size}\ns_mov_b32 s{d+3}, 0x20000")
        srd(SRDQ, 4, 12, 65536)
        srd(SRDK, 6, 13, 524288)
        def qdma(qb):
            for p in range(4 * qb, 4 * qb + 4):
                m = M0K + 4 + p if p < 4 else M0V + p
                i = 2 * p
                A(f"s_mov_b32 m0, s{m}")
                A(f"s_add_u32 s38, s37, {i*1024}")
                A(self.dma(12 + i % 4, SRDQ, "s38", 0))
                A(self.dma(12 + (i + 1) % 4, SRDQ, "s38", 1024))
        qdma(0)
        A(f"s_mov_b32 m0, s{M0K}")
        srd(SRDV, 8, 13, 524288)
        A(self.dma(16, SRDK, "0", 0))
        A(self.dma(17, SRDK, "0", 1024))
        qdma(1)
        A(f"s_mov_b32 s{S_OFF}, 0")
        for g in range(3):
            self.group_now(g + 1, g)
        srd(SRDO, 10, 12, 65536)
        if c["warmcode"]:
            pass
        A(f"v_and_b32 v2, 31, v{LANE}")
        A(f"v_lshrrev_b32 v3, 5, v{LANE}")
        A(f"v_and_b32 v4, 15, v{LANE}")
        A("v_xor_b32 v4, v4, v3\nv_lshlrev_b32 v4, 4, v4")
        A(f"v_lshl_add_u32 v{KADDR}, v2, 8, v4")
        for s in range(1, 8):
            A(f"v_xor_b32 v{KADDR+s}, {s<<5}, v{KADDR}")
        A(f"v_bfe_u32 v4, v{LANE}, 2, 2")
        A("v_lshl_add_u32 v5, v3, 2, v4\nv_lshlrev_b32 v5, 8, v5")
        A("v_lshl_add_u32 v5, v4, 6, v5")
        A(f"v_bfe_u32 v6, v{LANE}, 4, 1\nv_lshl_add_u32 v5, v6, 5, v5")
        A(f"v_and_b32 v6, 1, v{LANE}\nv_lshl_add_u32 v5, v6, 4, v5")
        A(f"v_bfe_u32 v6, v{LANE}, 1, 1\nv_lshl_add_u32 v5, v6, 3, v5")
        A(f"v_add_u32 v{VADDR}, {VBASE}, v5")
        for b in range(1, 4):
            A(f"v_xor_b32 v{VADDR+b}, {b<<6}, v{VADDR}")
        A("v_lshrrev_b32 v4, 3, v2\nv_mul_u32_u24 v4, 6144, v4")
        A(f"v_add_u32 v4, s{S_WB}, v4")
        for s in range(8):
            A(f"v_add_u32 v{P[0]+s}, v{KADDR+s}, v4")
            A(f"v_add_u32 v{P[1]+s}, 0x10000, v{P[0]+s}")
        cc = f2u(math.log2(math.e) / math.sqrt(128.0))
        A(f"s_mov_b32 s{S_C}, {cc:#x}\ns_mov_b32 s{S_C+1}, {cc:#x}")
        for i in range(128):
            A(f"v_mov_b32 v{O[0]+i}, 0")
        A(f"v_mov_b32 v{L0}, 0\nv_mov_b32 v{L1}, 0")
        A(f"s_mov_b32 s{S_CNT}, 0")
        A("s_waitcnt vmcnt(22)")
        for s in range(8):
            A(f"ds_read_b128 {vr(S[0]+4*s,4)}, v{P[0]+s} offset:32768")
        A("s_waitcnt vmcnt(20)\ns_barrier")
        if c["stamps"]:
            A(stamp(1))
            A("s_waitcnt lgkmcnt(0)")
        for s in range(8):
            A(self.rd_k(s, 0))
        A("s_waitcnt lgkmcnt(8)")
        self.group_now(4, 3)
        for t in self.scale_q(0, S[0]):
            A(t)
        A("s_waitcnt vmcnt(16)")
        for s in range(8):
            A(f"ds_read_b128 {vr(NEGM[0]+4*s,4)}, v{P[1]+s} offset:32768")
        A("s_waitcnt lgkmcnt(0)")
        self.group_now(5, 4)
        self.group_now(6, 5)
        sq = self.scale_q(1, NEGM[0])
        for s in range(8):
            A(self.mf_qk(0, s, czero=True))
            for t in sq[20 * s:20 * s + 20]:
                A(t)
        A("s_nop 1")
        for s in range(8):
            A(self.mf_qk(1, s, czero=True))
        self.rowmax(0, 0, 1)
        for i in range(16):
            A(f"v_sub_f32 v{NEGM[0]+i}, 0, v0")
            A(f"v_sub_f32 v{S[0]+i}, v{S[0]+i}, v0")
        self.rowmax(1, 2, 3)
        for i in range(16):
            A(f"v_sub_f32 v{NEGM[1]+i}, 0, v2")
            A(f"v_sub_f32 v{S[1]+i}, v{S[1]+i}, v2")

    def lfin(self, qb, dst):
        l = (L0, L1)[qb]
        return [f"v_mov_b32 v{dst}, v{l}", "s_nop 1", f"v_permlane32_swap_b32 v{l}, v{dst}",
                f"v_add_f32 v{l}, v{l}, v{dst}", f"v_rcp_f32 v{dst}, v{l}"]

    def norm_pack(self, qb, rc, pk):
        r = []
        for b in range(4):
            for jj in range(2):
                k = 2 * b + jj
                base = O[qb] + 16 * b + 8 * jj
                l = []
                for i in range(4):
                    l.append(f"v_pk_mul_f32 {vr(base+2*i,2)}, {vr(base+2*i,2)}, {vr(rc,2)} op_sel_hi:[1,0]")
                for i in range(4):
                    l.append(f"v_cvt_pk_bf16_f32 v{pk+4*k+i}, v{base+2*i}, v{base+2*i+1}")
                wa = 8 + 2 * (b & 1) + jj
                l.append(f"ds_write_b128 v{wa}, {vr(pk+4*k,4)} offset:{(b>>1)*128+qb*32768}")
                r.append(l)
        return r

    def epi_addr(self):
        r = []
        r += [f"v_and_b32 v2, 7, v{LANE}", f"v_lshrrev_b32 v3, 5, v{LANE}", "v_xor_b32 v3, v3, v2", "v_lshlrev_b32 v3, 4, v3",
              "v_lshl_add_u32 v3, v2, 8, v3", f"v_bfe_u32 v2, v{LANE}, 3, 2", "v_lshl_add_u32 v3, v2, 13, v3", f"v_add_u32 v8, s{S_WB}, v3",
              "v_xor_b32 v9, 32, v8", "v_xor_b32 v10, 64, v8", "v_xor_b32 v11, 0x60, v8"]
        r += [f"v_lshrrev_b32 v2, 4, v{LANE}", f"v_and_b32 v3, 15, v{LANE}", "v_xor_b32 v3, v3, v2", "v_lshlrev_b32 v3, 4, v3",
              "v_lshl_add_u32 v3, v2, 8, v3", f"v_add_u32 v12, s{S_WB}, v3", "v_xor_b32 v13, 0x440, v12"]
        r += [f"v_lshlrev_b32 v14, 4, v{LANE}", "v_add_u32 v14, s37, v14"]
        return r

    def epi_reads(self, qb, dst):
        return [f"ds_read_b128 {vr(dst+4*(i%8),4)}, v{12+i%2} offset:{(i//2)*8192}" for i in range(8 * qb, 8 * qb + 8)]

    def epi_stores(self, qb, src):
        st = self.c["stnt"]
        r = []
        for i in range(8 * qb, 8 * qb + 8):
            so = ("0", "s56", "s57", "s58")[i // 4]
            o = f" offset:{(i%4)*1024}" if i % 4 else ""
            r.append(f"buffer_store_dwordx4 {vr(src+4*(i%8),4)}, v14, {sr(SRDO,4)}, {so} offen{o} {st}".rstrip())
        return r

    def tail(self):
        c = self.c
        A = self.A
        if c["stamps"]:
            A(stamp(2))
        A("s_mov_b32 s56, 0x1000\ns_mov_b32 s57, 0x2000\ns_mov_b32 s58, 0x3000")
        A(self.sm_add(1, 5)); A(self.sm_cvt(1, 5))
        A(self.sm_exp(1, 6)); A(self.sm_exp(1, 7)); A(self.sm_exp(1, 8))
        A(self.sm_add(1, 6)); A(self.sm_add(1, 7)); A(self.sm_cvt(1, 7))
        A(self.sm_exp(1, 9)); A(self.sm_add(1, 8))
        A(self.mf_pv(1, 0))
        A(self.sm_exp(1, 10)); A(self.sm_exp(1, 11)); A(self.sm_add(1, 9)); A(self.sm_cvt(1, 9))
        A(self.mf_pv(1, 1))
        A(self.sm_exp(1, 12)); A(self.sm_exp(1, 13)); A(self.sm_add(1, 10)); A(self.sm_cvt(1, 11))
        A(self.mf_pv(1, 2))
        A(self.sm_exp(1, 14)); A(self.sm_exp(1, 15)); A(self.sm_add(1, 11)); A(self.sm_cvt(1, 13))
        A(self.mf_pv(1, 3))
        A(self.sm_cvt(1, 15)); A(self.sm_add(1, 12)); A(self.sm_add(1, 13)); A(self.sm_add(1, 14)); A(self.sm_add(1, 15))
        ea = self.epi_addr()
        lf0 = self.lfin(0, 4)
        A(self.mf_pv(1, 4))
        for t in lf0: A(t)
        A(self.mf_pv(1, 5))
        for t in ea[:6]: A(t)
        A(self.mf_pv(1, 6))
        for t in ea[6:12]: A(t)
        A(self.mf_pv(1, 7))
        for t in ea[12:]: A(t)
        A("s_waitcnt vmcnt(0) lgkmcnt(0)")
        self.finish(lf0_done=True)

    def finish(self, lf0_done):
        A = self.A
        if not lf0_done:
            for t in self.epi_addr(): A(t)
            for t in self.lfin(0, 4): A(t)
            A("s_nop 0")
        n0 = self.norm_pack(0, 4, NEGM[0])
        for bl in n0:
            for t in bl: A(t)
        for t in self.lfin(1, 6): A(t)
        A("s_waitcnt lgkmcnt(0)")
        for t in self.epi_reads(0, O[0]): A(t)
        n1 = self.norm_pack(1, 6, S[0])
        st0 = self.epi_stores(0, O[0])
        for k, bl in enumerate(n1):
            for t in bl[:-1]: A(t)
            if k >= 2:
                if k == 2:
                    A("s_waitcnt lgkmcnt(2)")
                A(st0[k - 2])
            A(bl[-1])
        A(st0[6]); A(st0[7])
        A("s_waitcnt lgkmcnt(0)")
        for t in self.epi_reads(1, O[0] + 32): A(t)
        st1 = self.epi_stores(1, O[0] + 32)
        for k in range(8):
            A(f"s_waitcnt lgkmcnt({7-k})")
            A(st1[k])

    def check_and_slow(self):
        c = self.c
        A = self.A
        th = f2u(THRESH)
        A(f"s_mov_b32 s12, {th:#x}")
        A(f"v_cmp_nlt_f32 vcc, v{L0}, s12".replace(f"v{L0}, s12", f"v{L0}, s12"))
        self.out.pop()
        A(f"v_cmp_ngt_f32 s[38:39], s12, v{L0}")
        A(f"v_cmp_ngt_f32 vcc, s12, v{L1}")
        A(f"v_and_b32 v2, 3, v{LANE}\nv_lshlrev_b32 v2, 11, v2\nv_add_u32 v2, {VBASE}, v2")
        A(f"v_mov_b32 v3, s{M0V}")
        A("s_or_b64 vcc, vcc, s[38:39]")
        A("s_cmp_lg_u64 vcc, 0")
        A("s_cselect_b32 s12, 1, 0")
        if c["force_slow"]:
            A("s_mov_b32 s12, 1")
        A("v_mov_b32 v5, s12")
        A("ds_write_b32 v3, v5")
        A("s_waitcnt lgkmcnt(0)\ns_barrier")
        A("ds_read_b32 v5, v2")
        A("s_waitcnt lgkmcnt(0)")
        A("v_cmp_ne_u32 vcc, 0, v5")
        if c["stamps"]:
            A("s_waitcnt vmcnt(0)")
            A(stamp(3))
            A("s_waitcnt lgkmcnt(0)")
        A("s_nop 4")
        A("s_cbranch_vccnz L_slow")
        if c["stamps"]:
            A(stamp_flush(4, 3))
        A("L_end:\ns_endpgm")

    def slow(self):
        A = self.A
        M = (24, 25)
        A("L_slow:")
        A("s_waitcnt vmcnt(0)")
        for i in range(128):
            A(f"v_mov_b32 v{O[0]+i}, 0")
        A(f"v_mov_b32 v{L0}, 0\nv_mov_b32 v{L1}, 0")
        A(f"v_mov_b32 v{M[0]}, 0xff7fffff\nv_mov_b32 v{M[1]}, 0xff7fffff")
        A(f"v_subrev_u32 v16, 0x2000, v{KDA}\nv_subrev_u32 v17, 0x2000, v{KDB}")
        A(f"s_mov_b32 s{S_OFF}, 0")
        A("L_slow_loop:")
        A("s_barrier")
        so = f"s{S_OFF}"
        A(f"s_mov_b32 m0, s{M0K}\ns_nop 0")
        A(self.dma(16, SRDK, so, 0)); A(self.dma(17, SRDK, so, 1024))
        A(f"s_mov_b32 m0, s{M0V}\ns_nop 0")
        A(self.dma(VDA, SRDV, so, 0)); A(self.dma(VDA, SRDV, so, 1024))
        A("s_waitcnt vmcnt(0)\ns_barrier")
        for s in range(8): A(self.rd_k(s, 0))
        A("s_waitcnt lgkmcnt(0)")
        for x in range(16):
            A(self.rd_v(x, 0))
            if x == 7: A("s_waitcnt lgkmcnt(0)")
        for qb in range(2):
            for s in range(8): A(self.mf_qk(qb, s, czero=True))
        A("s_nop 15")
        for qb in range(2):
            l = (L0, L1)[qb]
            self.rowmax(qb, 0, 1)
            A(f"v_max_f32 v0, v0, v{M[qb]}")
            A(f"v_sub_f32 v1, v{M[qb]}, v0")
            A("v_exp_f32 v1, v1")
            A(f"v_mov_b32 v{M[qb]}, v0")
            A(f"v_mul_f32 v{l}, v{l}, v1")
            for i in range(64):
                A(f"v_mul_f32 v{O[qb]+i}, v{O[qb]+i}, v1")
            for e in range(16):
                A(f"v_sub_f32 v{S[qb]+e}, v{S[qb]+e}, v0")
            for e in range(16):
                A(self.sm_exp(qb, e))
            A("s_nop 0")
            for e in range(16):
                A(self.sm_add(qb, e))
                if e % 2: A(self.sm_cvt(qb, e))
        A("s_waitcnt lgkmcnt(0)\ns_nop 1")
        for qb in range(2):
            for f in range(8): A(self.mf_pv(qb, f))
        A("s_nop 15")
        A(f"s_add_u32 s{S_OFF}, s{S_OFF}, 0x2000")
        A(f"s_cmp_lt_u32 s{S_OFF}, 0x80000")
        A("s_cbranch_scc1 L_slow_loop")
        A("s_barrier")
        self.finish(lf0_done=False)
        A("s_endpgm")

    def build(self):
        A = self.A
        self.prologue()
        p_end = len(self.out)
        self.step(0, first=True)
        A("s_branch L_pos1")
        f_end = len(self.out)
        A(".p2align 6")
        A("L_loop:")
        b0 = len(self.out)
        self.step(0)
        b1 = len(self.out)
        A("L_pos1:")
        for pos in range(1, 8):
            self.step(pos)
        A(f"s_add_u32 s{S_CNT}, s{S_CNT}, 1")
        A(f"s_cmp_lt_u32 s{S_CNT}, 8")
        A("s_cbranch_scc1 L_loop")
        b2 = len(self.out)
        self.tail()
        self.check_and_slow()
        t_end = len(self.out)
        self.slow()
        o = self.out
        probs = []
        probs += hazard.check(o[:f_end] + o[b1:b2] + o[b0:b2] + o[b2:t_end], "main")
        sl = o[t_end:]
        i0 = sl.index("L_slow_loop:")
        i1 = sl.index("s_cbranch_scc1 L_slow_loop")
        probs += hazard.check(o[b2:t_end] + sl[:i1] + sl[i0:], "slow")
        for p in probs[:20]:
            print("HAZARD", p, file=sys.stderr)
        body = "\n".join(("" if (l.endswith(":") or l.startswith(".")) else "    ") + l for l in o)
        return wrap(body, lds=131072, nvgpr=384, accum=256, nsgpr=102,
                    extra_desc="  .amdhsa_float_denorm_mode_32 3\n")


if __name__ == "__main__":
    import ast
    out = sys.argv[1]
    kw = {}
    for a in sys.argv[2:]:
        k, v = a.split("=", 1)
        try:
            v = ast.literal_eval(v)
        except Exception:
            pass
        kw[k] = v
    open(out, "w").write(Gen(**kw).build())
```

```python
import re

TRANS = ("v_exp_f32", "v_log_f32", "v_rcp_f32", "v_rsq_f32", "v_sqrt_f32")


def regs_of(op):
    op = op.strip().lstrip("-").strip("|")
    m = re.fullmatch(r"([vas])\[(\d+):(\d+)\]", op)
    if m:
        return [f"{m.group(1)}{i}" for i in range(int(m.group(2)), int(m.group(3)) + 1)]
    m = re.fullmatch(r"([vas])(\d+)", op)
    if m:
        return [op]
    if op in ("vcc", "exec", "m0"):
        return [op]
    return []


class I:
    def __init__(self, text):
        self.text = text
        t = text.split(";")[0].strip()
        self.t = t
        self.mn = t.split()[0] if t else ""
        rest = t[len(self.mn):].strip()
        ops = [o.strip() for o in rest.split(",")] if rest else []
        if ops:
            ops[-1] = ops[-1].split()[0] if ops[-1] else ops[-1]
        self.ops = ops
        mn = self.mn
        self.kind = "other"
        self.w = []
        self.r = []
        self.srcC = []
        self.srcAB = []
        self.store_data = []
        if mn.endswith(":") or mn == "" or mn.startswith("."):
            self.kind = "label"
        elif mn.startswith("v_smfmac"):
            self.kind = "mfma"
            self.w = regs_of(ops[0])
            self.srcAB = regs_of(ops[1]) + regs_of(ops[2]) + regs_of(ops[3])
            self.srcC = regs_of(ops[0])
            self.r = self.srcAB + self.srcC
            self.passes = 8
        elif mn.startswith("v_mfma"):
            self.kind = "mfma"
            self.w = regs_of(ops[0])
            self.srcAB = regs_of(ops[1]) + regs_of(ops[2])
            self.srcC = regs_of(ops[3])
            self.r = self.srcAB + self.srcC
            self.passes = 8 if "32x32x16" in mn else (4 if "16x16x32" in mn else 2)
        elif mn.startswith("v_"):
            self.kind = "valu"
            if mn.startswith("v_permlane32_swap") or mn.startswith("v_permlane16_swap"):
                self.w = regs_of(ops[0]) + regs_of(ops[1])
                self.r = list(self.w)
            elif mn in ("v_nop",):
                pass
            else:
                self.w = regs_of(ops[0])
                for o in ops[1:]:
                    self.r += regs_of(o)
                if mn.startswith("v_fmac") or mn.startswith("v_dot2c"):
                    self.r += self.w
                if mn.startswith("v_cndmask") and len(ops) == 3:
                    self.r.append("vcc")
        elif mn.startswith("ds_read"):
            self.kind = "ds"
            self.w = regs_of(ops[0])
            self.r = regs_of(ops[1])
        elif mn.startswith("ds_write"):
            self.kind = "ds"
            for o in ops:
                self.r += regs_of(o)
        elif mn.startswith("buffer_load") or mn.startswith("global_load"):
            self.kind = "vmem"
            if t.endswith(" lds"):
                for o in ops:
                    self.r += regs_of(o)
                self.r.append("m0")
                self.dma = True
            else:
                self.w = regs_of(ops[0])
                for o in ops[1:]:
                    self.r += regs_of(o)
        elif mn.startswith("buffer_store") or mn.startswith("global_store"):
            self.kind = "vmem"
            for o in ops:
                self.r += regs_of(o)
            if mn.endswith("x4") or mn.endswith("x3"):
                self.store_data = regs_of(ops[0])
        elif mn.startswith("s_load") or mn.startswith("s_mem"):
            self.kind = "smem"
            self.w = regs_of(ops[0])
        elif mn == "s_nop":
            self.kind = "nop"
        elif mn == "s_waitcnt":
            self.kind = "wait"
        elif mn.startswith("s_cbranch") or mn in ("s_branch", "s_endpgm", "s_barrier", "s_setprio", "s_setpc_b64", "s_sleep"):
            self.kind = "ctl"
        elif mn.startswith("s_cmp"):
            self.kind = "salu"
            for o in ops:
                self.r += regs_of(o)
        elif mn.startswith("s_"):
            self.kind = "salu"
            self.w = regs_of(ops[0])
            for o in ops[1:]:
                self.r += regs_of(o)
        self.states = 0 if self.kind == "label" else 1
        if self.kind == "nop":
            self.states = int(ops[0]) + 1


def check(lines, name=""):
    ins = [I(x) for x in lines]
    ins = [i for i in ins if i.kind != "label"]
    probs = []
    for j, c in enumerate(ins):
        dist = 0
        for i in range(j - 1, max(-1, j - 40), -1):
            p = ins[i]
            need = 0
            pw, cr, cw = set(p.w), set(c.r), set(c.w)
            if p.kind == "valu":
                vw = {x for x in pw if x[0] in "va" and x != "vcc"}
                sw = {x for x in pw if x[0] == "s" or x == "vcc"}
                if c.kind == "mfma" and vw & cr:
                    need = max(need, 2)
                if c.mn.startswith("v_permlane") and vw & cr:
                    need = max(need, 2)
                if c.mn.startswith("v_readfirstlane") or c.mn.startswith("v_readlane"):
                    if vw & cr:
                        need = max(need, 1)
                if p.mn.replace("_e32", "").replace("_e64", "") in TRANS and c.kind in ("valu",) and vw & cr:
                    if c.mn.replace("_e32", "").replace("_e64", "") not in TRANS:
                        need = max(need, 1)
                if sw & cr and c.kind == "vmem":
                    need = max(need, 5)
                if sw & cr and c.kind == "valu":
                    need = max(need, 2)
                if "sdwa" in p.mn and c.kind == "valu" and vw & (cr | cw):
                    need = max(need, 1)
            if p.kind == "mfma":
                n = {2: 5, 4: 8, 8: 12}[p.passes]
                if c.kind in ("valu",) and pw & (cr | cw):
                    need = max(need, n)
                if c.kind in ("ds", "vmem") and pw & (cr | cw):
                    need = max(need, n)
                if c.kind == "mfma":
                    if pw & set(c.srcAB):
                        need = max(need, n)
                    if pw & set(c.srcC):
                        if not (p.w == c.srcC and p.passes == c.passes):
                            need = max(need, {2: 4, 4: 6, 8: 10}[p.passes])
                        elif p.passes == 2:
                            need = max(need, 2)
                if c.kind == "valu" and set(p.srcC) & cw:
                    need = max(need, {2: 1, 4: 3, 8: 7}[p.passes])
            if p.kind == "salu" and "m0" in pw and getattr(c, "dma", False):
                need = max(need, 1)
            if p.store_data and set(p.store_data) & cw:
                need = max(need, 2)
            if need > dist:
                probs.append(f"{name}: need {need} have {dist}: [{p.t}] -> [{c.t}]")
            dist += p.states
            if dist >= 20:
                break
    pend_l = []
    pend_v = []
    for c in ins:
        if c.kind == "wait":
            m = re.search(r"lgkmcnt\((\d+)\)", c.t)
            if m:
                n = int(m.group(1))
                if n > 15:
                    probs.append(f"{name}: lgkmcnt>15 {c.t}")
                if any(k == "smem" for _, _, k in pend_l) and n != 0:
                    pass
                else:
                    pend_l = pend_l[len(pend_l) - n:] if n and n < len(pend_l) else ([] if n == 0 else pend_l)
            m = re.search(r"vmcnt\((\d+)\)", c.t)
            if m:
                n = int(m.group(1))
                if n > 63:
                    probs.append(f"{name}: vmcnt>63 {c.t}")
                pend_v = pend_v[len(pend_v) - n:] if n and n < len(pend_v) else ([] if n == 0 else pend_v)
            continue
        touched = set(c.r) | set(c.w)
        for regs, t, k in pend_l + pend_v:
            if regs & touched:
                probs.append(f"{name}: unwaited load [{t}] -> [{c.t}]")
        if c.kind in ("ds", "smem"):
            pend_l.append((set(c.w), c.t, c.kind))
        if c.kind == "vmem":
            pend_v.append((set(c.w), c.t, c.kind))
    return probs
```

```python
import sys, struct, math
from asmlib import *
import hazard


def f2u(x):
    return struct.unpack("<I", struct.pack("<f", x))[0]


DEFAULTS = dict(
    nt="nt",
    stnt="",
    stamps=False,
    nodma=False,
    nobar=False,
    force_slow=False,
    pv="snake",
    epi="lds",
    trace=False,
    stagger=0,
)

ONES = 20
IDX = 24
LANE = 25
KDA, KDB, VDA, VDB = 26, 27, 28, 29
KADDR = 32
VADDR = 36
LS = (44, 48)
P = 52
NEGM = 68
S = 96
O = 128
TMP = 84
AQ = 0
AK = 64
AV = 96
SRDQ, SRDK, SRDV, SRDO = 16, 20, 24, 28
S_CNT, S_OFF, S_C = 32, 33, 34
S_WB = 36
S_QO = 37
M0K, M0V = 40, 48
VBASE = 65536
THRESH = 2.0 ** 30


def vr(a, n):
    return f"v[{a}:{a+n-1}]"


def ar(a, n):
    return f"a[{a}:{a+n-1}]"


def sr(a, n):
    return f"s[{a}:{a+n-1}]"


class Gen:
    def __init__(self, **kw):
        self.c = dict(DEFAULTS)
        for k in kw:
            assert k in self.c, k
        self.c.update(kw)
        self.out = []

    def A(self, s):
        if isinstance(s, (list, tuple)):
            for x in s:
                self.A(x)
            return
        for l in s.split("\n"):
            if l.strip():
                self.out.append(l.strip())

    def dma(self, voff, srd, soff, imm):
        nt = self.c["nt"]
        o = f" offset:{imm}" if imm else ""
        return f"buffer_load_dwordx4 v{voff}, {sr(srd,4)}, {soff} offen{o} {nt} lds".replace("  ", " ")

    def group(self, kslot, vslot):
        so = f"s{S_OFF}"
        return [
            f"s_mov_b32 m0, s{M0K+kslot}",
            self.dma(KDA, SRDK, so, 0),
            self.dma(KDB, SRDK, so, 1024),
            f"s_mov_b32 m0, s{M0V+vslot}",
            self.dma(VDA, SRDV, so, 0),
            self.dma(VDB, SRDV, so, 1024),
            f"s_add_u32 s{S_OFF}, s{S_OFF}, 0x2000",
        ]

    def group_now(self, kslot, vslot):
        g = self.group(kslot, vslot)
        self.A([g[0], "s_nop 0", g[1], g[2], g[3], "s_nop 0", g[4], g[5], g[6]])

    def mf_qk(self, q, kb, s, czero=False):
        d = vr(S + 8 * q + 4 * kb, 4)
        c = ("0" if czero else vr(NEGM + 4 * q, 4)) if s == 0 else d
        return f"v_mfma_f32_16x16x32_bf16 {d}, {ar(AK+16*kb+4*s,4)}, {ar(AQ+16*q+4*s,4)}, {c}"

    def qk_seg(self, h, czero=False):
        return [self.mf_qk(q, kb, s, czero) for kb in range(2) for q in (2 * h, 2 * h + 1) for s in range(4)]

    def mf_pv(self, q, db):
        o = vr(O + 32 * q + 4 * db, 4)
        return f"v_mfma_f32_16x16x32_bf16 {o}, {ar(AV+4*db,4)}, {vr(P+4*q,4)}, {o}"

    def pv_seg(self, h):
        r = []
        for db in range(8):
            qs = (2 * h, 2 * h + 1)
            if self.c["pv"] == "snake" and db % 2:
                qs = qs[::-1]
            r += [self.mf_pv(q, db) for q in qs]
        return r

    def mf_rs(self, h):
        return f"v_smfmac_f32_16x16x64_bf16 {vr(LS[h],4)}, {vr(ONES,4)}, {vr(P+8*h,8)}, v{IDX}"

    def rd_k(self, j, slot):
        kb, s = j // 4, j % 4
        return f"ds_read_b128 {ar(AK+4*j,4)}, v{KADDR+s} offset:{slot*8192+kb*4096}"

    def rd_v(self, x, slot):
        db, kb = x // 2, x % 2
        return f"ds_read_b64_tr_b16 {ar(AV+4*db+2*kb,2)}, v{VADDR+db} offset:{slot*8192+kb*4096}"

    def el(self, h, e):
        blk, r = e // 4, e % 4
        q, kb = 2 * h + blk % 2, blk // 2
        return q, kb, r

    def sm_exp(self, h, e):
        q, kb, r = self.el(h, e)
        x = S + 8 * q + 4 * kb + r
        return f"v_exp_f32 v{x}, v{x}"

    def sm_cvt(self, h, e):
        q, kb, r = self.el(h, e)
        x = S + 8 * q + 4 * kb + r
        return f"v_cvt_pk_bf16_f32 v{P+4*q+2*kb+r//2}, v{x-1}, v{x}"

    def step(self, pos, first=False, var=0, last_in_body=False):
        c = self.c
        A = self.A
        mf = self.qk_seg(0) + self.pv_seg(1) + self.qk_seg(1) + self.pv_seg(0)
        sc = [[] for _ in range(64)]
        ds = [[] for _ in range(64)]
        va = [[] for _ in range(64)]
        for h, a in ((0, 8), (1, 40)):
            for e in range(16):
                i = a + 2 * e
                prev = i >= 64
                if not (first and prev):
                    va[i % 64].append(self.sm_exp(h, e))
                    if e % 2:
                        va[(i + 1) % 64].append(self.sm_cvt(h, e))
        grp = self.group((pos + 7) % 8, (pos + 6) % 8)
        dslots = [1, 5, 9, 13]
        rslots = list(range(17, 64, 2))
        zds = None
        reads = [self.rd_v(x, pos) for x in range(16)] + [self.rd_k(j, (pos + 1) % 8) for j in range(8)]
        for i, r in zip(rslots, reads):
            ds[i].append(r)
        if not c["nodma"]:
            sc[0].append(grp[0]); ds[dslots[0]].append(grp[1]); ds[dslots[1]].append(grp[2])
            sc[8].append(grp[3]); ds[dslots[2]].append(grp[4]); ds[dslots[3]].append(grp[5])
            sc[14].append(grp[6])
            sc[15].append("s_waitcnt vmcnt(24)")
        sc[47].append("s_waitcnt lgkmcnt(5)")
        sc[56].append("s_waitcnt lgkmcnt(4)")
        sc[63].append("s_waitcnt lgkmcnt(3)")
        if not first:
            sc[7].append("s_waitcnt lgkmcnt(0)")
        if c["trace"]:
            sc[10].append("s_memtime s[60:61]")
            sc[11].append("s_memrealtime s[62:63]")
            va[21].append(f"v_mov_b32_dpp v{TMP+8}, v{TMP+8} wave_shr:1 row_mask:0xf bank_mask:0xf")
            va[25].append(f"v_mov_b32_dpp v{TMP+10}, v{TMP+10} wave_shr:1 row_mask:0xf bank_mask:0xf")
            va[49].append(f"v_writelane_b32 v{TMP+8}, s60, 0")
            va[53].append(f"v_writelane_b32 v{TMP+10}, s62, 0")
        if last_in_body:
            sc[60].append(f"s_add_u32 s{S_CNT}, s{S_CNT}, 1")
            sc[62].append(f"s_cmp_lt_u32 s{S_CNT}, 8")
        for i in range(64):
            skip = first and i < 48
            if i == 16:
                if not first:
                    A(self.mf_rs(1))
                if not c["nobar"]:
                    A("s_barrier")
            if i == 48:
                A(self.mf_rs(0))
            if not skip:
                A(mf[i])
            elif (va[i] and va[i][0].startswith("v_cvt") and not ds[i] and not sc[i]) or (ds[i] and "lds" in ds[i][0]):
                A("s_nop 0")
            A(sc[i]); A(ds[i]); A(va[i])
            if first and i == 47:
                A("s_nop 0")

    def rowmax(self, q, dst, tmp):
        s = S + 8 * q
        return [f"v_max3_f32 v{dst}, v{s}, v{s+1}, v{s+2}",
                f"v_max3_f32 v{dst}, v{dst}, v{s+3}, v{s+4}",
                f"v_max3_f32 v{dst}, v{dst}, v{s+5}, v{s+6}",
                f"v_max_f32 v{dst}, v{dst}, v{s+7}",
                f"v_mov_b32 v{tmp}, v{dst}", "s_nop 1",
                f"v_permlane16_swap_b32 v{dst}, v{tmp}",
                f"v_max_f32 v{dst}, v{dst}, v{tmp}",
                f"v_mov_b32 v{tmp}, v{dst}", "s_nop 1",
                f"v_permlane32_swap_b32 v{dst}, v{tmp}",
                f"v_max_f32 v{dst}, v{dst}, v{tmp}"]

    def rowmax2(self, h, dst):
        a = self.rowmax(2 * h, dst, dst + 2)
        b = self.rowmax(2 * h + 1, dst + 1, dst + 3)
        r = []
        for x, y in zip(a, b):
            if x.startswith("s_nop"):
                r.append("s_nop 0")
            else:
                r += [x, y]
        return r

    def setm(self, h, m):
        r = []
        for j in range(2):
            q = 2 * h + j
            for i in range(8):
                r.append(f"v_sub_f32 v{S+8*q+i}, v{S+8*q+i}, v{m+j}")
            for i in range(4):
                r.append(f"v_sub_f32 v{NEGM+4*q+i}, 0, v{m+j}")
        return r

    def scale_q(self, q, raw):
        r = []
        for i in range(16):
            t = 2 * (i % 4)
            r.append(f"v_lshlrev_b32 v{t}, 16, v{raw+i}")
            r.append(f"v_and_b32 v{t+1}, 0xffff0000, v{raw+i}")
            r.append(f"v_pk_mul_f32 {vr(t,2)}, {vr(t,2)}, {sr(S_C,2)}")
            r.append(f"v_cvt_pk_bf16_f32 v{8+i%4}, v{t}, v{t+1}")
            r.append(f"v_accvgpr_write_b32 a{AQ+16*q+i}, v{8+i%4}")
        return r

    def prologue(self):
        c = self.c
        A = self.A
        A("s_cmp_ge_u32 s2, 256\ns_cbranch_scc1 L_end")
        if c["stamps"]:
            A(stamp(0))
        A("s_load_dwordx4 s[4:7], s[0:1], 0\ns_load_dwordx4 s[8:11], s[0:1], 16")
        A(f"v_lshrrev_b32 v1, 6, v0\nv_and_b32 v{LANE}, 63, v0")
        A("v_readfirstlane_b32 s3, v1")
        A(f"v_lshrrev_b32 v2, 4, v{LANE}")
        A(f"v_and_b32 v3, 15, v{LANE}")
        A("v_xor_b32 v4, v3, v2\nv_lshlrev_b32 v4, 4, v4\nv_lshl_add_u32 v12, v2, 8, v4")
        for j in range(1, 4):
            A(f"v_xor_b32 v{12+j}, {j<<6}, v12")
        A(f"s_lshl_b32 s{S_WB}, s3, 11")
        for k in range(8):
            A(f"s_add_u32 s{M0K+k}, s{S_WB}, {k*8192}")
            A(f"s_add_u32 s{M0V+k}, s{S_WB}, {VBASE+k*8192}")
        A("s_and_b32 s12, s3, 1\ns_lshl_b32 s12, s12, 7")
        A(f"v_xor_b32 v16, s12, v12\nv_add_u32 v16, s{S_WB}, v16\nv_xor_b32 v17, 64, v16")
        A(f"v_add_u32 v{KDA}, 0x2000, v16\nv_add_u32 v{KDB}, 0x2000, v17")
        A(f"v_lshlrev_b32 v5, 1, v2\nv_xor_b32 v5, v3, v5\nv_lshlrev_b32 v5, 4, v5\nv_lshl_add_u32 v5, v2, 8, v5\nv_add_u32 v{VDA}, s{S_WB}, v5")
        A(f"v_xor_b32 v{VDB}, 0x80, v{VDA}")
        A("s_lshl_b32 s12, s2, 16\ns_lshl_b32 s13, s2, 19")
        A(f"s_lshl_b32 s{S_QO}, s3, 14")
        A("s_waitcnt lgkmcnt(0)")
        def srd(d, lo, off, size):
            A(f"s_add_u32 s{d}, s{lo}, s{off}\ns_addc_u32 s{d+1}, s{lo+1}, 0\ns_mov_b32 s{d+2}, {size}\ns_mov_b32 s{d+3}, 0x20000")
        srd(SRDQ, 4, 12, 65536)
        srd(SRDK, 6, 13, 524288)
        def qdma(h):
            for p in range(4 * h, 4 * h + 4):
                m = M0K + 4 + p if p < 4 else M0V + p
                i = 2 * p
                A(f"s_mov_b32 m0, s{m}")
                A(f"s_add_u32 s38, s{S_QO}, {i*1024}")
                A(self.dma(12 + i % 4, SRDQ, "s38", 0))
                A(self.dma(12 + (i + 1) % 4, SRDQ, "s38", 1024))
        qdma(0)
        A(f"s_mov_b32 m0, s{M0K}")
        srd(SRDV, 8, 13, 524288)
        A(self.dma(16, SRDK, "0", 0))
        A(self.dma(17, SRDK, "0", 1024))
        qdma(1)
        A(f"s_mov_b32 s{S_OFF}, 0")
        for g in range(3):
            self.group_now(g + 1, g)
        srd(SRDO, 10, 12, 65536)
        A(f"v_lshl_add_u32 v{KADDR}, v3, 8, v4")
        for s in range(1, 4):
            A(f"v_xor_b32 v{KADDR+s}, {s<<6}, v{KADDR}")
        A(f"v_lshrrev_b32 v5, 2, v{LANE}\nv_and_b32 v6, 7, v5\nv_lshlrev_b32 v6, 5, v6\nv_lshl_add_u32 v6, v5, 8, v6")
        A(f"v_and_b32 v5, 3, v{LANE}\nv_lshl_add_u32 v6, v5, 3, v6\nv_add_u32 v{VADDR}, {VBASE}, v6")
        for b in range(1, 8):
            A(f"v_xor_b32 v{VADDR+b}, {b<<5}, v{VADDR}")
        A("v_lshrrev_b32 v5, 3, v3\nv_mul_u32_u24 v5, 6144, v5")
        A(f"v_add_u32 v5, s{S_WB}, v5")
        for s in range(4):
            A(f"v_add_u32 v{TMP+s}, v{KADDR+s}, v5")
            A(f"v_add_u32 v{TMP+4+s}, 0x10000, v{TMP+s}")
        cc = f2u(math.log2(math.e) / math.sqrt(128.0))
        A(f"s_mov_b32 s{S_C}, {cc:#x}\ns_mov_b32 s{S_C+1}, {cc:#x}")
        A(f"v_lshrrev_b32 v5, 4, v{LANE}\nv_xor_b32 v5, v5, v{LANE}\nv_and_b32 v5, 2, v5")
        A(f"v_cmp_eq_u32 vcc, 0, v5\nv_mov_b32 v6, 0x3f803f80\nv_and_b32 v5, 1, v{LANE}")
        for i in range(4):
            A(f"v_cndmask_b32 v{ONES+i}, 0, v6, vcc")
        A(f"v_cmp_eq_u32 vcc, 0, v5\nv_mov_b32 v6, 0x44444444\nv_mov_b32 v7, 0xeeeeeeee")
        A(f"v_cndmask_b32 v{IDX}, v7, v6, vcc")
        for i in range(128):
            A(f"v_mov_b32 v{O+i}, 0")
        for i in range(8):
            A(f"v_mov_b32 v{LS[0]+i}, 0")
        A(f"s_mov_b32 s{S_CNT}, 0")
        def qread(q, raw):
            for s in range(4):
                A(f"ds_read_b128 {vr(raw+4*s,4)}, v{TMP+4*(q//2)+s} offset:{32768+(q&1)*16384}")
        A("s_waitcnt vmcnt(26)")
        qread(0, S)
        A("s_waitcnt vmcnt(22)")
        qread(1, S + 16)
        A("s_waitcnt lgkmcnt(4)")
        A(self.scale_q(0, S))
        A("s_waitcnt vmcnt(20) lgkmcnt(0)\ns_barrier")
        if c["stamps"]:
            A(stamp(1))
            A("s_waitcnt lgkmcnt(0)")
        for j in range(8):
            A(self.rd_k(j, 0))
        self.group_now(4, 3)
        A(self.scale_q(1, S + 16))
        A("s_waitcnt vmcnt(20)")
        qread(2, P)
        A("s_waitcnt vmcnt(16)")
        qread(3, P + 16)
        A("s_waitcnt lgkmcnt(4)")
        sq = self.scale_q(2, P)
        qk = self.qk_seg(0, czero=True)
        for i in range(16):
            A(qk[i])
            A(sq[5 * i:5 * i + 5])
        A("s_waitcnt lgkmcnt(0)")
        self.group_now(5, 4)
        self.group_now(6, 5)
        A(self.scale_q(3, P + 16))
        A("s_nop 1")
        qk = self.qk_seg(1, czero=True)
        fill = self.rowmax2(0, 0) + self.setm(0, 0)
        n = len(fill)
        for i in range(16):
            A(qk[i])
            A(fill[n * i // 16:n * (i + 1) // 16])
        A("s_nop 7")
        A(self.rowmax2(1, 4))
        A(self.setm(1, 4))

    def lfin(self, h, dst):
        l = LS[h]
        return [f"v_add_f32 v{l}, v{l}, v{l+1}", f"v_add_f32 v{l+2}, v{l+2}, v{l+3}",
                f"v_rcp_f32 v{dst}, v{l}", f"v_rcp_f32 v{dst+2}, v{l+2}"]

    def norm_pack(self, h, rc, pk):
        r = []
        for j in range(2):
            q = 2 * h + j
            for dp in range(4):
                k = 4 * j + dp
                base = O + 32 * q + 8 * dp
                t = pk + 4 * k
                l = []
                for i in range(4):
                    l.append(f"v_pk_mul_f32 {vr(base+2*i,2)}, {vr(base+2*i,2)}, {vr(rc+2*j,2)} op_sel_hi:[1,0]")
                for i in (0, 2, 1, 3):
                    l.append(f"v_cvt_pk_bf16_f32 v{t+i}, v{base+2*i}, v{base+2*i+1}")
                sw = [f"v_permlane16_swap_b32 v{t}, v{t+2}", f"v_permlane16_swap_b32 v{t+1}, v{t+3}"]
                if self.c["epi"] == "lds":
                    out = f"ds_write_b128 v{8+(dp&1)}, {vr(t,4)} offset:{(dp>>1)*128+q*16384}"
                else:
                    so = ("0", "s56", "s57", "s58")[q]
                    o = f" offset:{dp*64}" if dp else ""
                    out = f"buffer_store_dwordx4 {vr(t,4)}, v14, {sr(SRDO,4)}, {so} offen{o} {self.c['stnt']}".rstrip()
                r.append((l, sw, out))
        return r

    def epi_addr(self):
        r = []
        r += [f"v_bfe_u32 v2, v{LANE}, 4, 1", f"v_lshrrev_b32 v3, 5, v{LANE}", "v_lshl_add_u32 v3, v2, 1, v3"]
        if self.c["epi"] == "lds":
            r += [f"v_and_b32 v2, 7, v{LANE}", "v_xor_b32 v3, v3, v2", "v_lshlrev_b32 v3, 4, v3",
                  "v_lshl_add_u32 v3, v2, 8, v3", f"v_bfe_u32 v2, v{LANE}, 3, 1", "v_lshl_add_u32 v3, v2, 13, v3",
                  f"v_add_u32 v8, s{S_WB}, v3", "v_xor_b32 v9, 64, v8"]
            r += [f"v_lshrrev_b32 v2, 4, v{LANE}", f"v_and_b32 v3, 15, v{LANE}", "v_xor_b32 v3, v3, v2", "v_lshlrev_b32 v3, 4, v3",
                  "v_lshl_add_u32 v3, v2, 8, v3", f"v_add_u32 v12, s{S_WB}, v3", "v_xor_b32 v13, 0x440, v12"]
            r += [f"v_lshlrev_b32 v14, 4, v{LANE}", f"v_add_u32 v14, s{S_QO}, v14"]
        else:
            r += ["v_lshlrev_b32 v3, 4, v3", f"v_and_b32 v2, 15, v{LANE}", "v_lshl_add_u32 v3, v2, 8, v3", f"v_add_u32 v14, s{S_QO}, v3"]
        return r

    def epi_reads(self, h, dst):
        return [f"ds_read_b128 {vr(dst+4*(i%8),4)}, v{12+i%2} offset:{(i//2)*8192}" for i in range(8 * h, 8 * h + 8)]

    def epi_stores(self, h, src):
        st = self.c["stnt"]
        r = []
        for i in range(8 * h, 8 * h + 8):
            so = ("0", "s56", "s57", "s58")[i // 4]
            o = f" offset:{(i%4)*1024}" if i % 4 else ""
            r.append(f"buffer_store_dwordx4 {vr(src+4*(i%8),4)}, v14, {sr(SRDO,4)}, {so} offen{o} {st}".rstrip())
        return r

    def emit_norm(self, bundles, extra=None):
        A = self.A
        n = len(bundles)
        for k in range(n + 1):
            if k < n:
                A(bundles[k][0][:2])
            else:
                A("s_nop 1")
            if k > 0:
                A(bundles[k - 1][1])
            if k < n:
                A(bundles[k][0][2:4])
            if k > 0:
                if extra:
                    A(extra(k - 1))
                A(bundles[k - 1][2])
            if k < n:
                A(bundles[k][0][4:])

    def tail(self):
        c = self.c
        A = self.A
        if c["stamps"]:
            A(stamp(2))
        A("s_mov_b32 s56, 0x1000\ns_mov_b32 s57, 0x2000\ns_mov_b32 s58, 0x3000")
        for e in (12, 13, 14, 15):
            A(self.sm_exp(1, e))
        A("s_nop 0")
        A(self.sm_cvt(1, 13)); A(self.sm_cvt(1, 15))
        A(self.lfin(0, 4))
        A(self.mf_rs(1))
        ea = self.epi_addr()
        pv = self.pv_seg(1)
        for i in range(16):
            A(pv[i])
            A(ea[2 * i:2 * i + 2])
        A(ea[32:])
        A("s_waitcnt vmcnt(0) lgkmcnt(0)")
        self.finish()

    def finish(self):
        A = self.A
        if self.c["epi"] == "direct":
            self.emit_norm(self.norm_pack(0, 4, S))
            A(self.lfin(1, 8))
            A("s_nop 0")
            self.emit_norm(self.norm_pack(1, 8, O))
            return
        self.emit_norm(self.norm_pack(0, 4, S))
        A(self.lfin(1, 16))
        A("s_waitcnt lgkmcnt(0)")
        A(self.epi_reads(0, O))
        st0 = self.epi_stores(0, O)
        def extra(k):
            if k < 2:
                return []
            return (["s_waitcnt lgkmcnt(2)"] if k == 2 else []) + [st0[k - 2]]
        self.emit_norm(self.norm_pack(1, 16, S), extra)
        A(st0[6:8])
        A("s_waitcnt lgkmcnt(0)")
        A(self.epi_reads(1, O + 32))
        st1 = self.epi_stores(1, O + 32)
        for k in range(8):
            A(f"s_waitcnt lgkmcnt({7-k})")
            A(st1[k])

    def check_and_slow(self):
        c = self.c
        A = self.A
        th = f2u(THRESH)
        A(f"s_mov_b32 s12, {th:#x}")
        A(f"v_cmp_ngt_f32 s[38:39], s12, v{LS[0]}")
        A(f"v_cmp_ngt_f32 s[14:15], s12, v{LS[0]+2}")
        A(f"v_cmp_ngt_f32 s[60:61], s12, v{LS[1]}")
        A(f"v_cmp_ngt_f32 vcc, s12, v{LS[1]+2}")
        A(f"v_and_b32 v2, 3, v{LANE}\nv_lshlrev_b32 v2, 11, v2\nv_add_u32 v2, {VBASE}, v2")
        A(f"v_mov_b32 v3, s{M0V}")
        A("s_or_b64 vcc, vcc, s[38:39]\ns_or_b64 vcc, vcc, s[14:15]\ns_or_b64 vcc, vcc, s[60:61]")
        A("s_cmp_lg_u64 vcc, 0")
        A("s_cselect_b32 s12, 1, 0")
        if c["force_slow"]:
            A("s_mov_b32 s12, 1")
        A("v_mov_b32 v5, s12")
        A("ds_write_b32 v3, v5")
        A("s_waitcnt lgkmcnt(0)\ns_barrier")
        A("ds_read_b32 v5, v2")
        A("s_waitcnt lgkmcnt(0)")
        A("v_cmp_ne_u32 vcc, 0, v5")
        if c["stamps"]:
            A("s_waitcnt vmcnt(0)")
            A(stamp(3))
            A("s_waitcnt lgkmcnt(0)")
        A("s_nop 4")
        A("s_cbranch_vccnz L_slow")
        if c["trace"]:
            A("s_load_dwordx2 s[56:57], s[0:1], 40\ns_waitcnt lgkmcnt(0)\ns_mov_b32 s58, 0x1000000\ns_mov_b32 s59, 0x20000")
            A("s_lshl_b32 s36, s2, 2\ns_add_u32 s36, s36, s3\ns_lshl_b32 s36, s36, 10\ns_add_u32 s36, s36, 0x100000")
            A(f"v_sub_u32 v2, 63, v{LANE}\nv_lshlrev_b32 v2, 4, v2\nv_mov_b32 v{TMP+11}, s70\nv_mov_b32 v{TMP+9}, v{TMP+8}")
            A(f"buffer_store_dwordx4 v[{TMP+8}:{TMP+11}], v2, s[56:59], s36 offen\ns_waitcnt vmcnt(0)")
        if c["stamps"]:
            A(stamp_flush(4, 3))
        A("L_end:\ns_endpgm")

    def slow(self):
        A = self.A
        M = TMP
        A("L_slow:")
        A("s_waitcnt vmcnt(0)")
        for i in range(128):
            A(f"v_mov_b32 v{O+i}, 0")
        for i in range(8):
            A(f"v_mov_b32 v{LS[0]+i}, 0")
        for q in range(4):
            A(f"v_mov_b32 v{M+q}, 0xff7fffff")
        A(f"v_subrev_u32 v{TMP+4}, 0x2000, v{KDA}\nv_subrev_u32 v{TMP+5}, 0x2000, v{KDB}")
        A(f"s_mov_b32 s{S_OFF}, 0")
        A("L_slow_loop:")
        A("s_barrier")
        so = f"s{S_OFF}"
        A(f"s_mov_b32 m0, s{M0K}\ns_nop 0")
        A(self.dma(TMP + 4, SRDK, so, 0)); A(self.dma(TMP + 5, SRDK, so, 1024))
        A(f"s_mov_b32 m0, s{M0V}\ns_nop 0")
        A(self.dma(VDA, SRDV, so, 0)); A(self.dma(VDB, SRDV, so, 1024))
        A("s_waitcnt vmcnt(0)\ns_barrier")
        for j in range(8):
            A(self.rd_k(j, 0))
        A("s_waitcnt lgkmcnt(0)")
        for x in range(16):
            A(self.rd_v(x, 0))
            if x == 7:
                A("s_waitcnt lgkmcnt(0)")
        A(self.qk_seg(0, czero=True)); A(self.qk_seg(1, czero=True))
        A("s_nop 15")
        for q in range(4):
            h, j = q // 2, q % 2
            A(self.rowmax(q, 0, 1))
            A(f"v_max_f32 v0, v0, v{M+q}")
            A(f"v_sub_f32 v1, v{M+q}, v0")
            A("v_exp_f32 v1, v1")
            A(f"v_mov_b32 v{M+q}, v0")
            A(f"v_mul_f32 v{LS[h]+2*j}, v{LS[h]+2*j}, v1\nv_mul_f32 v{LS[h]+2*j+1}, v{LS[h]+2*j+1}, v1")
            for i in range(32):
                A(f"v_mul_f32 v{O+32*q+i}, v{O+32*q+i}, v1")
            for e in range(8):
                A(f"v_sub_f32 v{S+8*q+e}, v{S+8*q+e}, v0")
        for h in range(2):
            for e in range(16):
                A(self.sm_exp(h, e))
            A("s_nop 0")
            for e in range(1, 16, 2):
                A(self.sm_cvt(h, e))
        A("s_waitcnt lgkmcnt(0)\ns_nop 1")
        for h in range(2):
            A(self.mf_rs(h))
            A(self.pv_seg(h))
        A("s_nop 15")
        A(f"s_add_u32 s{S_OFF}, s{S_OFF}, 0x2000")
        A(f"s_cmp_lt_u32 s{S_OFF}, 0x80000")
        A("s_cbranch_scc1 L_slow_loop")
        A("s_barrier")
        A(self.epi_addr())
        A(self.lfin(0, 4))
        A("s_nop 0")
        self.finish()
        A("s_endpgm")

    def build(self):
        A = self.A
        self.prologue()
        self.step(0, first=True)
        A("s_branch L_pos1")
        f_end = len(self.out)
        A(".p2align 6")
        A("L_loop:")
        b0 = len(self.out)
        self.step(0)
        b1 = len(self.out)
        A("L_pos1:")
        for pos in range(1, 8):
            self.step(pos, last_in_body=(pos == 7))
        A("s_cbranch_scc1 L_loop")
        b2 = len(self.out)
        self.tail()
        self.check_and_slow()
        t_end = len(self.out)
        self.slow()
        o = self.out
        probs = []
        probs += hazard.check(o[:f_end] + o[b1:b2] + o[b0:b2] + o[b2:t_end], "main")
        sl = o[t_end:]
        i0 = sl.index("L_slow_loop:")
        i1 = sl.index("s_cbranch_scc1 L_slow_loop")
        probs += hazard.check(o[b2:t_end] + sl[:i1] + sl[i0:], "slow")
        probs = [p for p in probs if "s[60:63]" not in p]
        for p in probs[:20]:
            print("HAZARD", p, file=sys.stderr)
        body = "\n".join(("" if (l.endswith(":") or l.startswith(".")) else "    ") + l for l in o)
        return wrap(body, lds=131072, nvgpr=384, accum=256, nsgpr=102,
                    extra_desc="  .amdhsa_float_denorm_mode_32 3\n")


if __name__ == "__main__":
    import ast
    out = sys.argv[1]
    kw = {}
    for a in sys.argv[2:]:
        k, v = a.split("=", 1)
        try:
            v = ast.literal_eval(v)
        except Exception:
            pass
        kw[k] = v
    open(out, "w").write(Gen(**kw).build())
```

```python
import sys, struct, math
from asmlib import *
import hazard


def f2u(x):
    return struct.unpack("<I", struct.pack("<f", x))[0]


DEFAULTS = dict(
    nt="nt",
    stnt="",
    stamps=False,
    nodma=False,
    nobar=False,
    force_slow=False,
    pv="snake",
    epi="lds",
    trace=False,
    pat=1,
    rot=1,
    noexp=False, nolds=False, nors=False, halfdma=False, nocvt=False,
    pad=0,
    stagger=0,
)

ONES = 20
IDX = 24
LANE = 25
KDA, KDB, VDA, VDB = 26, 27, 28, 29
KADDR = 32
VADDR = 36
LS = (44, 48)
P = 52
NEGM = 68
S = 96
O = 128
TMP = 84
AQ = 0
AK = 64
AV = 96
SRDQ, SRDK, SRDV, SRDO = 16, 20, 24, 28
S_CNT, S_OFF, S_C = 32, 33, 34
S_WB = 36
S_T = (66, 67)
S_X = 68
S_QO = 37
M0K, M0V = 40, 48
VBASE = 65536
THRESH = 2.0 ** 30


def vr(a, n):
    return f"v[{a}:{a+n-1}]"


def ar(a, n):
    return f"a[{a}:{a+n-1}]"


def sr(a, n):
    return f"s[{a}:{a+n-1}]"


class Gen:
    def __init__(self, **kw):
        self.c = dict(DEFAULTS)
        for k in kw:
            assert k in self.c, k
        self.c.update(kw)
        self.out = []

    def A(self, s):
        if isinstance(s, (list, tuple)):
            for x in s:
                self.A(x)
            return
        for l in s.split("\n"):
            if l.strip():
                self.out.append(l.strip())

    def dma(self, voff, srd, soff, imm):
        nt = self.c["nt"]
        o = f" offset:{imm}" if imm else ""
        return f"buffer_load_dwordx4 v{voff}, {sr(srd,4)}, {soff} offen{o} {nt} lds".replace("  ", " ")

    def tnext(self, d):
        return [f"s_add_u32 s{S_OFF}, s{S_OFF}, 0x800", f"s_or_b32 s{S_OFF}, s{S_OFF}, 0x18000", f"s_xor_b32 s{d}, s{S_OFF}, s{S_X}"]

    def group(self, kslot, vslot):
        so = f"s{S_OFF}"
        if self.c["pat"]:
            sk, sv = S_T[kslot & 1], S_T[vslot & 1]
            return [
                f"s_mov_b32 m0, s{M0K+kslot}",
                self.dma(KDA, SRDK, f"s{sk}", 0),
                self.dma(KDB, SRDK, f"s{sk}", 1024),
                f"s_mov_b32 m0, s{M0V+vslot}",
                self.dma(VDA, SRDV, f"s{sv}", 0),
                self.dma(VDB, SRDV, f"s{sv}", 1024),
                self.tnext(sv),
            ]
        return [
            f"s_mov_b32 m0, s{M0K+kslot}",
            self.dma(KDA, SRDK, so, 0),
            self.dma(KDB, SRDK, so, 1024),
            f"s_mov_b32 m0, s{M0V+vslot}",
            self.dma(VDA, SRDV, so, 0),
            self.dma(VDB, SRDV, so, 1024),
            f"s_add_u32 s{S_OFF}, s{S_OFF}, 0x2000",
        ]

    def group_now(self, kslot, vslot):
        g = self.group(kslot, vslot)
        self.A([g[0], "s_nop 0", g[1], g[2], g[3], "s_nop 0", g[4], g[5], g[6]])

    def mf_qk(self, q, kb, s, czero=False):
        d = vr(S + 8 * q + 4 * kb, 4)
        c = ("0" if czero else vr(NEGM + 4 * q, 4)) if s == 0 else d
        return f"v_mfma_f32_16x16x32_bf16 {d}, {ar(AK+16*kb+4*s,4)}, {ar(AQ+16*q+4*s,4)}, {c}"

    def qk_seg(self, h, czero=False):
        return [self.mf_qk(q, kb, s, czero) for kb in range(2) for q in (2 * h, 2 * h + 1) for s in range(4)]

    def mf_pv(self, q, db):
        o = vr(O + 32 * q + 4 * db, 4)
        return f"v_mfma_f32_16x16x32_bf16 {o}, {ar(AV+4*db,4)}, {vr(P+4*q,4)}, {o}"

    def pv_seg(self, h):
        r = []
        for db in range(8):
            qs = (2 * h, 2 * h + 1)
            if self.c["pv"] == "snake" and db % 2:
                qs = qs[::-1]
            r += [self.mf_pv(q, db) for q in qs]
        return r

    def mf_rs(self, h):
        return f"v_smfmac_f32_16x16x64_bf16 {vr(LS[h],4)}, {vr(ONES,4)}, {vr(P+8*h,8)}, v{IDX}"

    def rd_k(self, j, slot):
        kb, s = j // 4, j % 4
        return f"ds_read_b128 {ar(AK+4*j,4)}, v{KADDR+s} offset:{slot*8192+kb*4096}"

    def rd_v(self, x, slot):
        db, kb = x // 2, x % 2
        return f"ds_read_b64_tr_b16 {ar(AV+4*db+2*kb,2)}, v{VADDR+db} offset:{slot*8192+kb*4096}"

    def el(self, h, e):
        blk, r = e // 4, e % 4
        q, kb = 2 * h + blk % 2, blk // 2
        return q, kb, r

    def sm_exp(self, h, e):
        q, kb, r = self.el(h, e)
        x = S + 8 * q + 4 * kb + r
        return f"v_exp_f32 v{x}, v{x}"

    def sm_cvt(self, h, e):
        q, kb, r = self.el(h, e)
        x = S + 8 * q + 4 * kb + r
        return f"v_cvt_pk_bf16_f32 v{P+4*q+2*kb+r//2}, v{x-1}, v{x}"

    def step(self, pos, first=False, var=0, last_in_body=False):
        c = self.c
        A = self.A
        mf = self.qk_seg(0) + self.pv_seg(1) + self.qk_seg(1) + self.pv_seg(0)
        sc = [[] for _ in range(64)]
        ds = [[] for _ in range(64)]
        va = [[] for _ in range(64)]
        for h, a in ((0, 8), (1, 40)):
            for e in range(16):
                i = a + 2 * e
                prev = i >= 64
                if not (first and prev):
                    va[i % 64].append(self.sm_exp(h, e))
                    if e % 2:
                        va[(i + 1) % 64].append(self.sm_cvt(h, e))
        grp = self.group((pos + 7) % 8, (pos + 6) % 8)
        dslots = [1, 5, 9, 13]
        rslots = list(range(17, 64, 2))
        zds = None
        reads = [self.rd_v(x, pos) for x in range(16)] + [self.rd_k(j, (pos + 1) % 8) for j in range(8)]
        for i, r in zip(rslots, reads):
            ds[i].append(r)
        if not c["nodma"]:
            sc[0].append(grp[0]); ds[dslots[0]].append(grp[1]); ds[dslots[1]].append(grp[2])
            sc[8].append(grp[3]); ds[dslots[2]].append(grp[4]); ds[dslots[3]].append(grp[5])
            if c["pat"]:
                sc[12].append(grp[6][0]); sc[14].append(grp[6][1]); sc[18].append(grp[6][2])
            else:
                sc[14].append(grp[6])
            sc[15].append("s_waitcnt vmcnt(24)")
        sc[47].append("s_waitcnt lgkmcnt(5)")
        sc[56].append("s_waitcnt lgkmcnt(4)")
        sc[63].append("s_waitcnt lgkmcnt(3)")
        if not first:
            sc[7].append("s_waitcnt lgkmcnt(0)")
        if c["noexp"]:
            va = [[x for x in l if not x.startswith("v_exp")] for l in va]
        if c["nocvt"]:
            va = [[x for x in l if not x.startswith("v_cvt")] for l in va]
        if c["nolds"] and not first:
            ds = [[x for x in l if not x.startswith("ds_read")] for l in ds]
        if c["halfdma"]:
            ds[dslots[1]] = []; ds[dslots[3]] = []
            sc[15] = ["s_waitcnt vmcnt(12)"]
        if c["trace"]:
            sc[10].append("s_memtime s[60:61]")
            sc[11].append("s_memrealtime s[62:63]")
            va[21].append(f"v_mov_b32_dpp v{TMP+8}, v{TMP+8} wave_shr:1 row_mask:0xf bank_mask:0xf")
            va[25].append(f"v_mov_b32_dpp v{TMP+10}, v{TMP+10} wave_shr:1 row_mask:0xf bank_mask:0xf")
            va[49].append(f"v_writelane_b32 v{TMP+8}, s60, 0")
            va[53].append(f"v_writelane_b32 v{TMP+10}, s62, 0")
        if last_in_body:
            sc[60].append(f"s_add_u32 s{S_CNT}, s{S_CNT}, 1")
            sc[62].append(f"s_cmp_lt_u32 s{S_CNT}, 8")
        for i in range(64):
            skip = first and i < 48
            if i == 16:
                if not first and not c["nors"]:
                    A(self.mf_rs(1))
                if not c["nobar"]:
                    A("s_barrier")
            if i == 48 and not c["nors"]:
                A(self.mf_rs(0))
            if i in (16, 32, 48, 0) and c["pad"]:
                n = c["pad"] // 4
                while n > 0:
                    A(f"s_nop {min(n, 16) - 1}")
                    n -= 16
            if not skip:
                A(mf[i])
            elif (va[i] and va[i][0].startswith("v_cvt") and not ds[i] and not sc[i]) or (ds[i] and "lds" in ds[i][0]):
                A("s_nop 0")
            A(sc[i]); A(ds[i]); A(va[i])
            if first and i == 47:
                A("s_nop 0")

    def rowmax(self, q, dst, tmp):
        s = S + 8 * q
        return [f"v_max3_f32 v{dst}, v{s}, v{s+1}, v{s+2}",
                f"v_max3_f32 v{dst}, v{dst}, v{s+3}, v{s+4}",
                f"v_max3_f32 v{dst}, v{dst}, v{s+5}, v{s+6}",
                f"v_max_f32 v{dst}, v{dst}, v{s+7}",
                f"v_mov_b32 v{tmp}, v{dst}", "s_nop 1",
                f"v_permlane16_swap_b32 v{dst}, v{tmp}",
                f"v_max_f32 v{dst}, v{dst}, v{tmp}",
                f"v_mov_b32 v{tmp}, v{dst}", "s_nop 1",
                f"v_permlane32_swap_b32 v{dst}, v{tmp}",
                f"v_max_f32 v{dst}, v{dst}, v{tmp}"]

    def rowmax2(self, h, dst):
        a = self.rowmax(2 * h, dst, dst + 2)
        b = self.rowmax(2 * h + 1, dst + 1, dst + 3)
        r = []
        for x, y in zip(a, b):
            if x.startswith("s_nop"):
                r.append("s_nop 0")
            else:
                r += [x, y]
        return r

    def setm(self, h, m):
        r = []
        for j in range(2):
            q = 2 * h + j
            for i in range(8):
                r.append(f"v_sub_f32 v{S+8*q+i}, v{S+8*q+i}, v{m+j}")
            for i in range(4):
                r.append(f"v_sub_f32 v{NEGM+4*q+i}, 0, v{m+j}")
        return r

    def scale_q(self, q, raw):
        r = []
        for i in range(16):
            t = 2 * (i % 4)
            r.append(f"v_lshlrev_b32 v{t}, 16, v{raw+i}")
            r.append(f"v_and_b32 v{t+1}, 0xffff0000, v{raw+i}")
            r.append(f"v_pk_mul_f32 {vr(t,2)}, {vr(t,2)}, {sr(S_C,2)}")
            r.append(f"v_cvt_pk_bf16_f32 v{8+i%4}, v{t}, v{t+1}")
            r.append(f"v_accvgpr_write_b32 a{AQ+16*q+i}, v{8+i%4}")
        return r

    def prologue(self):
        c = self.c
        A = self.A
        A("s_cmp_ge_u32 s2, 256\ns_cbranch_scc1 L_end")
        if c["stamps"]:
            A(stamp(0))
        A("s_load_dwordx4 s[4:7], s[0:1], 0\ns_load_dwordx4 s[8:11], s[0:1], 16")
        A(f"v_lshrrev_b32 v1, 6, v0\nv_and_b32 v{LANE}, 63, v0")
        A("v_readfirstlane_b32 s3, v1")
        A(f"v_lshrrev_b32 v2, 4, v{LANE}")
        A(f"v_and_b32 v3, 15, v{LANE}")
        A("v_xor_b32 v4, v3, v2\nv_lshlrev_b32 v4, 4, v4\nv_lshl_add_u32 v12, v2, 8, v4")
        for j in range(1, 4):
            A(f"v_xor_b32 v{12+j}, {j<<6}, v12")
        A(f"s_lshl_b32 s{S_WB}, s3, 11")
        for k in range(8):
            A(f"s_add_u32 s{M0K+k}, s{S_WB}, {k*8192}")
            A(f"s_add_u32 s{M0V+k}, s{S_WB}, {VBASE+k*8192}")
        A("s_and_b32 s12, s3, 1\ns_lshl_b32 s12, s12, 7")
        if c["pat"]:
            A(f"v_xor_b32 v6, v2, v1\nv_lshlrev_b32 v6, 8, v6\nv_lshl_add_u32 v6, v2, 15, v6")
            A(f"v_xor_b32 v16, s12, v4\nv_add_u32 v{KDA}, v16, v6\nv_xor_b32 v{KDB}, 64, v{KDA}")
            A(f"v_lshlrev_b32 v5, 1, v2\nv_xor_b32 v5, v3, v5\nv_lshl_add_u32 v{VDA}, v5, 4, v6")
            if c["rot"]:
                A(f"s_mul_i32 s{S_X}, s2, 0x9E3779B1\ns_lshr_b32 s{S_X}, s{S_X}, 11\ns_and_b32 s{S_T[0]}, s{S_X}, 0x67800")
            else:
                A(f"s_mov_b32 s{S_T[0]}, 0")
            A(f"s_or_b32 s{S_X}, s{S_T[0]}, 0x18000\ns_mov_b32 s{S_OFF}, 0x18800\ns_xor_b32 s{S_T[1]}, s{S_OFF}, s{S_X}")
        else:
            A(f"v_xor_b32 v16, s12, v12\nv_add_u32 v16, s{S_WB}, v16\nv_xor_b32 v17, 64, v16")
            A(f"v_add_u32 v{KDA}, 0x2000, v16\nv_add_u32 v{KDB}, 0x2000, v17")
            A(f"v_lshlrev_b32 v5, 1, v2\nv_xor_b32 v5, v3, v5\nv_lshlrev_b32 v5, 4, v5\nv_lshl_add_u32 v5, v2, 8, v5\nv_add_u32 v{VDA}, s{S_WB}, v5")
        A(f"v_xor_b32 v{VDB}, 0x80, v{VDA}")
        A("s_lshl_b32 s12, s2, 16\ns_lshl_b32 s13, s2, 19")
        A(f"s_lshl_b32 s{S_QO}, s3, 14")
        A("s_waitcnt lgkmcnt(0)")
        def srd(d, lo, off, size):
            A(f"s_add_u32 s{d}, s{lo}, s{off}\ns_addc_u32 s{d+1}, s{lo+1}, 0\ns_mov_b32 s{d+2}, {size}\ns_mov_b32 s{d+3}, 0x20000")
        srd(SRDQ, 4, 12, 65536)
        srd(SRDK, 6, 13, 524288)
        def qdma(h):
            for p in range(4 * h, 4 * h + 4):
                m = M0K + 4 + p if p < 4 else M0V + p
                i = 2 * p
                A(f"s_mov_b32 m0, s{m}")
                A(f"s_add_u32 s38, s{S_QO}, {i*1024}")
                A(self.dma(12 + i % 4, SRDQ, "s38", 0))
                A(self.dma(12 + (i + 1) % 4, SRDQ, "s38", 1024))
        qdma(0)
        A(f"s_mov_b32 m0, s{M0K}")
        srd(SRDV, 8, 13, 524288)
        if c["pat"]:
            A(self.dma(KDA, SRDK, f"s{S_T[0]}", 0))
            A(self.dma(KDB, SRDK, f"s{S_T[0]}", 1024))
            qdma(1)
        else:
            A(self.dma(16, SRDK, "0", 0))
            A(self.dma(17, SRDK, "0", 1024))
            qdma(1)
            A(f"s_mov_b32 s{S_OFF}, 0")
        for g in range(3):
            self.group_now(g + 1, g)
        srd(SRDO, 10, 12, 65536)
        A(f"v_lshl_add_u32 v{KADDR}, v3, 8, v4")
        for s in range(1, 4):
            A(f"v_xor_b32 v{KADDR+s}, {s<<6}, v{KADDR}")
        A(f"v_lshrrev_b32 v5, 2, v{LANE}\nv_and_b32 v6, 7, v5\nv_lshlrev_b32 v6, 5, v6\nv_lshl_add_u32 v6, v5, 8, v6")
        A(f"v_and_b32 v5, 3, v{LANE}\nv_lshl_add_u32 v6, v5, 3, v6\nv_add_u32 v{VADDR}, {VBASE}, v6")
        for b in range(1, 8):
            A(f"v_xor_b32 v{VADDR+b}, {b<<5}, v{VADDR}")
        A("v_lshrrev_b32 v5, 3, v3\nv_mul_u32_u24 v5, 6144, v5")
        A(f"v_add_u32 v5, s{S_WB}, v5")
        for s in range(4):
            A(f"v_add_u32 v{TMP+s}, v{KADDR+s}, v5")
            A(f"v_add_u32 v{TMP+4+s}, 0x10000, v{TMP+s}")
        cc = f2u(math.log2(math.e) / math.sqrt(128.0))
        A(f"s_mov_b32 s{S_C}, {cc:#x}\ns_mov_b32 s{S_C+1}, {cc:#x}")
        A(f"v_lshrrev_b32 v5, 4, v{LANE}\nv_xor_b32 v5, v5, v{LANE}\nv_and_b32 v5, 2, v5")
        A(f"v_cmp_eq_u32 vcc, 0, v5\nv_mov_b32 v6, 0x3f803f80\nv_and_b32 v5, 1, v{LANE}")
        for i in range(4):
            A(f"v_cndmask_b32 v{ONES+i}, 0, v6, vcc")
        A(f"v_cmp_eq_u32 vcc, 0, v5\nv_mov_b32 v6, 0x44444444\nv_mov_b32 v7, 0xeeeeeeee")
        A(f"v_cndmask_b32 v{IDX}, v7, v6, vcc")
        for i in range(128):
            A(f"v_mov_b32 v{O+i}, 0")
        for i in range(8):
            A(f"v_mov_b32 v{LS[0]+i}, 0")
        A(f"s_mov_b32 s{S_CNT}, 0")
        def qread(q, raw):
            for s in range(4):
                A(f"ds_read_b128 {vr(raw+4*s,4)}, v{TMP+4*(q//2)+s} offset:{32768+(q&1)*16384}")
        A("s_waitcnt vmcnt(26)")
        qread(0, S)
        A("s_waitcnt vmcnt(22)")
        qread(1, S + 16)
        A("s_waitcnt lgkmcnt(4)")
        A(self.scale_q(0, S))
        A("s_waitcnt vmcnt(20) lgkmcnt(0)\ns_barrier")
        if c["stamps"]:
            A(stamp(1))
            A("s_waitcnt lgkmcnt(0)")
        for j in range(8):
            A(self.rd_k(j, 0))
        self.group_now(4, 3)
        A(self.scale_q(1, S + 16))
        A("s_waitcnt vmcnt(20)")
        qread(2, P)
        A("s_waitcnt vmcnt(16)")
        qread(3, P + 16)
        A("s_waitcnt lgkmcnt(4)")
        sq = self.scale_q(2, P)
        qk = self.qk_seg(0, czero=True)
        for i in range(16):
            A(qk[i])
            A(sq[5 * i:5 * i + 5])
        A("s_waitcnt lgkmcnt(0)")
        self.group_now(5, 4)
        self.group_now(6, 5)
        A(self.scale_q(3, P + 16))
        A("s_nop 1")
        qk = self.qk_seg(1, czero=True)
        fill = self.rowmax2(0, 0) + self.setm(0, 0)
        n = len(fill)
        for i in range(16):
            A(qk[i])
            A(fill[n * i // 16:n * (i + 1) // 16])
        A("s_nop 7")
        A(self.rowmax2(1, 4))
        A(self.setm(1, 4))

    def lfin(self, h, dst):
        l = LS[h]
        return [f"v_add_f32 v{l}, v{l}, v{l+1}", f"v_add_f32 v{l+2}, v{l+2}, v{l+3}",
                f"v_rcp_f32 v{dst}, v{l}", f"v_rcp_f32 v{dst+2}, v{l+2}"]

    def norm_pack(self, h, rc, pk):
        r = []
        for j in range(2):
            q = 2 * h + j
            for dp in range(4):
                k = 4 * j + dp
                base = O + 32 * q + 8 * dp
                t = pk + 4 * k
                l = []
                for i in range(4):
                    l.append(f"v_pk_mul_f32 {vr(base+2*i,2)}, {vr(base+2*i,2)}, {vr(rc+2*j,2)} op_sel_hi:[1,0]")
                for i in (0, 2, 1, 3):
                    l.append(f"v_cvt_pk_bf16_f32 v{t+i}, v{base+2*i}, v{base+2*i+1}")
                sw = [f"v_permlane16_swap_b32 v{t}, v{t+2}", f"v_permlane16_swap_b32 v{t+1}, v{t+3}"]
                if self.c["epi"] == "lds":
                    out = f"ds_write_b128 v{8+(dp&1)}, {vr(t,4)} offset:{(dp>>1)*128+q*16384}"
                else:
                    so = ("0", "s56", "s57", "s58")[q]
                    o = f" offset:{dp*64}" if dp else ""
                    out = f"buffer_store_dwordx4 {vr(t,4)}, v14, {sr(SRDO,4)}, {so} offen{o} {self.c['stnt']}".rstrip()
                r.append((l, sw, out))
        return r

    def epi_addr(self):
        r = []
        r += [f"v_bfe_u32 v2, v{LANE}, 4, 1", f"v_lshrrev_b32 v3, 5, v{LANE}", "v_lshl_add_u32 v3, v2, 1, v3"]
        if self.c["epi"] == "lds":
            r += [f"v_and_b32 v2, 7, v{LANE}", "v_xor_b32 v3, v3, v2", "v_lshlrev_b32 v3, 4, v3",
                  "v_lshl_add_u32 v3, v2, 8, v3", f"v_bfe_u32 v2, v{LANE}, 3, 1", "v_lshl_add_u32 v3, v2, 13, v3",
                  f"v_add_u32 v8, s{S_WB}, v3", "v_xor_b32 v9, 64, v8"]
            r += [f"v_lshrrev_b32 v2, 4, v{LANE}", f"v_and_b32 v3, 15, v{LANE}", "v_xor_b32 v3, v3, v2", "v_lshlrev_b32 v3, 4, v3",
                  "v_lshl_add_u32 v3, v2, 8, v3", f"v_add_u32 v12, s{S_WB}, v3", "v_xor_b32 v13, 0x440, v12"]
            r += [f"v_lshlrev_b32 v14, 4, v{LANE}", f"v_add_u32 v14, s{S_QO}, v14"]
        else:
            r += ["v_lshlrev_b32 v3, 4, v3", f"v_and_b32 v2, 15, v{LANE}", "v_lshl_add_u32 v3, v2, 8, v3", f"v_add_u32 v14, s{S_QO}, v3"]
        return r

    def epi_reads(self, h, dst):
        return [f"ds_read_b128 {vr(dst+4*(i%8),4)}, v{12+i%2} offset:{(i//2)*8192}" for i in range(8 * h, 8 * h + 8)]

    def epi_stores(self, h, src):
        st = self.c["stnt"]
        r = []
        for i in range(8 * h, 8 * h + 8):
            so = ("0", "s56", "s57", "s58")[i // 4]
            o = f" offset:{(i%4)*1024}" if i % 4 else ""
            r.append(f"buffer_store_dwordx4 {vr(src+4*(i%8),4)}, v14, {sr(SRDO,4)}, {so} offen{o} {st}".rstrip())
        return r

    def emit_norm(self, bundles, extra=None):
        A = self.A
        n = len(bundles)
        for k in range(n + 1):
            if k < n:
                A(bundles[k][0][:2])
            else:
                A("s_nop 1")
            if k > 0:
                A(bundles[k - 1][1])
            if k < n:
                A(bundles[k][0][2:4])
            if k > 0:
                if extra:
                    A(extra(k - 1))
                A(bundles[k - 1][2])
            if k < n:
                A(bundles[k][0][4:])

    def tail(self):
        c = self.c
        A = self.A
        if c["stamps"]:
            A(stamp(2))
        A("s_mov_b32 s56, 0x1000\ns_mov_b32 s57, 0x2000\ns_mov_b32 s58, 0x3000")
        for e in (12, 13, 14, 15):
            A(self.sm_exp(1, e))
        A("s_nop 0")
        A(self.sm_cvt(1, 13)); A(self.sm_cvt(1, 15))
        A(self.lfin(0, 4))
        A(self.mf_rs(1))
        ea = self.epi_addr()
        pv = self.pv_seg(1)
        for i in range(16):
            A(pv[i])
            A(ea[2 * i:2 * i + 2])
        A(ea[32:])
        A("s_waitcnt vmcnt(0) lgkmcnt(0)")
        self.finish()

    def finish(self):
        A = self.A
        if self.c["epi"] == "direct":
            self.emit_norm(self.norm_pack(0, 4, S))
            A(self.lfin(1, 8))
            A("s_nop 0")
            self.emit_norm(self.norm_pack(1, 8, O))
            return
        self.emit_norm(self.norm_pack(0, 4, S))
        A(self.lfin(1, 16))
        A("s_waitcnt lgkmcnt(0)")
        A(self.epi_reads(0, O))
        st0 = self.epi_stores(0, O)
        def extra(k):
            if k < 2:
                return []
            return (["s_waitcnt lgkmcnt(2)"] if k == 2 else []) + [st0[k - 2]]
        self.emit_norm(self.norm_pack(1, 16, S), extra)
        A(st0[6:8])
        A("s_waitcnt lgkmcnt(0)")
        A(self.epi_reads(1, O + 32))
        st1 = self.epi_stores(1, O + 32)
        for k in range(8):
            A(f"s_waitcnt lgkmcnt({7-k})")
            A(st1[k])

    def check_and_slow(self):
        c = self.c
        A = self.A
        th = f2u(THRESH)
        A(f"s_mov_b32 s12, {th:#x}")
        A(f"v_cmp_ngt_f32 s[38:39], s12, v{LS[0]}")
        A(f"v_cmp_ngt_f32 s[14:15], s12, v{LS[0]+2}")
        A(f"v_cmp_ngt_f32 s[60:61], s12, v{LS[1]}")
        A(f"v_cmp_ngt_f32 vcc, s12, v{LS[1]+2}")
        A(f"v_and_b32 v2, 3, v{LANE}\nv_lshlrev_b32 v2, 11, v2\nv_add_u32 v2, {VBASE}, v2")
        A(f"v_mov_b32 v3, s{M0V}")
        A("s_or_b64 vcc, vcc, s[38:39]\ns_or_b64 vcc, vcc, s[14:15]\ns_or_b64 vcc, vcc, s[60:61]")
        A("s_cmp_lg_u64 vcc, 0")
        A("s_cselect_b32 s12, 1, 0")
        if c["noexp"] or c["nocvt"] or c["nolds"] or c["nors"] or c["halfdma"] or c["nodma"]:
            A("s_mov_b32 s12, 0")
        if c["force_slow"]:
            A("s_mov_b32 s12, 1")
        A("v_mov_b32 v5, s12")
        A("ds_write_b32 v3, v5")
        A("s_waitcnt lgkmcnt(0)\ns_barrier")
        A("ds_read_b32 v5, v2")
        A("s_waitcnt lgkmcnt(0)")
        A("v_cmp_ne_u32 vcc, 0, v5")
        if c["stamps"]:
            A("s_waitcnt vmcnt(0)")
            A(stamp(3))
            A("s_waitcnt lgkmcnt(0)")
        A("s_nop 4")
        A("s_cbranch_vccnz L_slow")
        if c["trace"]:
            A("s_load_dwordx2 s[56:57], s[0:1], 40\ns_waitcnt lgkmcnt(0)\ns_mov_b32 s58, 0x1000000\ns_mov_b32 s59, 0x20000")
            A("s_lshl_b32 s36, s2, 2\ns_add_u32 s36, s36, s3\ns_lshl_b32 s36, s36, 10\ns_add_u32 s36, s36, 0x100000")
            A(f"v_sub_u32 v2, 63, v{LANE}\nv_lshlrev_b32 v2, 4, v2\nv_mov_b32 v{TMP+11}, s70\nv_mov_b32 v{TMP+9}, v{TMP+8}")
            A(f"buffer_store_dwordx4 v[{TMP+8}:{TMP+11}], v2, s[56:59], s36 offen\ns_waitcnt vmcnt(0)")
        if c["stamps"]:
            A(stamp_flush(4, 3))
        A("L_end:\ns_endpgm")

    def slow(self):
        A = self.A
        M = TMP
        A("L_slow:")
        A("s_waitcnt vmcnt(0)")
        for i in range(128):
            A(f"v_mov_b32 v{O+i}, 0")
        for i in range(8):
            A(f"v_mov_b32 v{LS[0]+i}, 0")
        for q in range(4):
            A(f"v_mov_b32 v{M+q}, 0xff7fffff")
        kb = 0 if self.c["pat"] else 0x2000
        A(f"v_subrev_u32 v{TMP+4}, {kb}, v{KDA}\nv_subrev_u32 v{TMP+5}, {kb}, v{KDB}")
        A(f"s_mov_b32 s{S_OFF}, 0")
        A("L_slow_loop:")
        A("s_barrier")
        so = f"s{S_OFF}"
        A(f"s_mov_b32 m0, s{M0K}\ns_nop 0")
        A(self.dma(TMP + 4, SRDK, so, 0)); A(self.dma(TMP + 5, SRDK, so, 1024))
        A(f"s_mov_b32 m0, s{M0V}\ns_nop 0")
        A(self.dma(VDA, SRDV, so, 0)); A(self.dma(VDB, SRDV, so, 1024))
        A("s_waitcnt vmcnt(0)\ns_barrier")
        for j in range(8):
            A(self.rd_k(j, 0))
        A("s_waitcnt lgkmcnt(0)")
        for x in range(16):
            A(self.rd_v(x, 0))
            if x == 7:
                A("s_waitcnt lgkmcnt(0)")
        A(self.qk_seg(0, czero=True)); A(self.qk_seg(1, czero=True))
        A("s_nop 15")
        for q in range(4):
            h, j = q // 2, q % 2
            A(self.rowmax(q, 0, 1))
            A(f"v_max_f32 v0, v0, v{M+q}")
            A(f"v_sub_f32 v1, v{M+q}, v0")
            A("v_exp_f32 v1, v1")
            A(f"v_mov_b32 v{M+q}, v0")
            A(f"v_mul_f32 v{LS[h]+2*j}, v{LS[h]+2*j}, v1\nv_mul_f32 v{LS[h]+2*j+1}, v{LS[h]+2*j+1}, v1")
            for i in range(32):
                A(f"v_mul_f32 v{O+32*q+i}, v{O+32*q+i}, v1")
            for e in range(8):
                A(f"v_sub_f32 v{S+8*q+e}, v{S+8*q+e}, v0")
        for h in range(2):
            for e in range(16):
                A(self.sm_exp(h, e))
            A("s_nop 0")
            for e in range(1, 16, 2):
                A(self.sm_cvt(h, e))
        A("s_waitcnt lgkmcnt(0)\ns_nop 1")
        for h in range(2):
            A(self.mf_rs(h))
            A(self.pv_seg(h))
        A("s_nop 15")
        if self.c["pat"]:
            A(f"s_or_b32 s{S_OFF}, s{S_OFF}, 0x18000\ns_add_u32 s{S_OFF}, s{S_OFF}, 0x800\ns_andn2_b32 s{S_OFF}, s{S_OFF}, 0x18000")
        else:
            A(f"s_add_u32 s{S_OFF}, s{S_OFF}, 0x2000")
        A(f"s_cmp_lt_u32 s{S_OFF}, 0x80000")
        A("s_cbranch_scc1 L_slow_loop")
        A("s_barrier")
        A(self.epi_addr())
        A(self.lfin(0, 4))
        A("s_nop 0")
        self.finish()
        A("s_endpgm")

    def build(self):
        A = self.A
        self.prologue()
        self.step(0, first=True)
        A("s_branch L_pos1")
        f_end = len(self.out)
        A(".p2align 6")
        A("L_loop:")
        b0 = len(self.out)
        self.step(0)
        b1 = len(self.out)
        A("L_pos1:")
        for pos in range(1, 8):
            self.step(pos, last_in_body=(pos == 7))
        A("s_cbranch_scc1 L_loop")
        b2 = len(self.out)
        self.tail()
        self.check_and_slow()
        t_end = len(self.out)
        self.slow()
        o = self.out
        probs = []
        probs += hazard.check(o[:f_end] + o[b1:b2] + o[b0:b2] + o[b2:t_end], "main")
        sl = o[t_end:]
        i0 = sl.index("L_slow_loop:")
        i1 = sl.index("s_cbranch_scc1 L_slow_loop")
        probs += hazard.check(o[b2:t_end] + sl[:i1] + sl[i0:], "slow")
        probs = [p for p in probs if "s[60:63]" not in p]
        for p in probs[:(0 if self.c["trace"] else 20)]:
            print("HAZARD", p, file=sys.stderr)
        body = "\n".join(("" if (l.endswith(":") or l.startswith(".")) else "    ") + l for l in o)
        return wrap(body, lds=131072, nvgpr=384, accum=256, nsgpr=102,
                    extra_desc="  .amdhsa_float_denorm_mode_32 3\n")


if __name__ == "__main__":
    import ast
    out = sys.argv[1]
    kw = {}
    for a in sys.argv[2:]:
        k, v = a.split("=", 1)
        try:
            v = ast.literal_eval(v)
        except Exception:
            pass
        kw[k] = v
    open(out, "w").write(Gen(**kw).build())
```

```python
import sys, struct, math
from asmlib import *
import hazard


def f2u(x):
    return struct.unpack("<I", struct.pack("<f", x))[0]


DEFAULTS = dict(
    nt="nt",
    stnt="",
    stamps=False,
    nodma=False,
    nobar=False,
    force_slow=False,
    pv="snake",
    epi="lds",
    trace=False,
    spin=0,
    dbgt=False,
    pat=1,
    rot=1,
    noexp=False, nolds=False, nors=False, halfdma=False, nocvt=False,
    pad=0,
    stagger=0,
)

ONES = 20
IDX = 24
LANE = 25
KDA, KDB, VDA, VDB = 26, 27, 28, 29
KADDR = 32
VADDR = 36
LS = (44, 48)
P = 52
NEGM = 68
S = 96
O = 128
TMP = 84
AQ = 0
AK = 64
AV = 96
SRDQ, SRDK, SRDV, SRDO = 16, 20, 24, 28
S_CNT, S_OFF, S_C = 32, 33, 34
S_WB = 36
S_T = (66, 67)
S_X = 68
S_QO = 37
M0K, M0V = 40, 48
VBASE = 65536
THRESH = 2.0 ** 30


def vr(a, n):
    return f"v[{a}:{a+n-1}]"


def ar(a, n):
    return f"a[{a}:{a+n-1}]"


def sr(a, n):
    return f"s[{a}:{a+n-1}]"


class Gen:
    def __init__(self, **kw):
        self.c = dict(DEFAULTS)
        for k in kw:
            assert k in self.c, k
        self.c.update(kw)
        self.out = []

    def A(self, s):
        if isinstance(s, (list, tuple)):
            for x in s:
                self.A(x)
            return
        for l in s.split("\n"):
            if l.strip():
                self.out.append(l.strip())

    def dma(self, voff, srd, soff, imm):
        nt = self.c["nt"]
        o = f" offset:{imm}" if imm else ""
        return f"buffer_load_dwordx4 v{voff}, {sr(srd,4)}, {soff} offen{o} {nt} lds".replace("  ", " ")

    def tnext(self, d):
        return [f"s_add_u32 s{S_OFF}, s{S_OFF}, 0x800", f"s_or_b32 s{S_OFF}, s{S_OFF}, 0x18000", f"s_xor_b32 s{d}, s{S_OFF}, s{S_X}"]

    def group(self, kslot, vslot):
        so = f"s{S_OFF}"
        if self.c["pat"]:
            sk, sv = S_T[kslot & 1], S_T[vslot & 1]
            return [
                f"s_mov_b32 m0, s{M0K+kslot}",
                self.dma(KDA, SRDK, f"s{sk}", 0),
                self.dma(KDB, SRDK, f"s{sk}", 1024),
                f"s_mov_b32 m0, s{M0V+vslot}",
                self.dma(VDA, SRDV, f"s{sv}", 0),
                self.dma(VDB, SRDV, f"s{sv}", 1024),
                self.tnext(sv),
            ]
        return [
            f"s_mov_b32 m0, s{M0K+kslot}",
            self.dma(KDA, SRDK, so, 0),
            self.dma(KDB, SRDK, so, 1024),
            f"s_mov_b32 m0, s{M0V+vslot}",
            self.dma(VDA, SRDV, so, 0),
            self.dma(VDB, SRDV, so, 1024),
            f"s_add_u32 s{S_OFF}, s{S_OFF}, 0x2000",
        ]

    def group_now(self, kslot, vslot):
        g = self.group(kslot, vslot)
        self.A([g[0], "s_nop 0", g[1], g[2], g[3], "s_nop 0", g[4], g[5], g[6]])

    def mf_qk(self, q, kb, s, czero=False):
        d = vr(S + 8 * q + 4 * kb, 4)
        c = ("0" if czero else vr(NEGM + 4 * q, 4)) if s == 0 else d
        return f"v_mfma_f32_16x16x32_bf16 {d}, {ar(AK+16*kb+4*s,4)}, {ar(AQ+16*q+4*s,4)}, {c}"

    def qk_seg(self, h, czero=False):
        return [self.mf_qk(q, kb, s, czero) for kb in range(2) for q in (2 * h, 2 * h + 1) for s in range(4)]

    def mf_pv(self, q, db):
        o = vr(O + 32 * q + 4 * db, 4)
        return f"v_mfma_f32_16x16x32_bf16 {o}, {ar(AV+4*db,4)}, {vr(P+4*q,4)}, {o}"

    def pv_seg(self, h):
        r = []
        for db in range(8):
            qs = (2 * h, 2 * h + 1)
            if self.c["pv"] == "snake" and db % 2:
                qs = qs[::-1]
            r += [self.mf_pv(q, db) for q in qs]
        return r

    def mf_rs(self, h):
        return f"v_smfmac_f32_16x16x64_bf16 {vr(LS[h],4)}, {vr(ONES,4)}, {vr(P+8*h,8)}, v{IDX}"

    def rd_k(self, j, slot):
        kb, s = j // 4, j % 4
        return f"ds_read_b128 {ar(AK+4*j,4)}, v{KADDR+s} offset:{slot*8192+kb*4096}"

    def rd_v(self, x, slot):
        db, kb = x // 2, x % 2
        return f"ds_read_b64_tr_b16 {ar(AV+4*db+2*kb,2)}, v{VADDR+db} offset:{slot*8192+kb*4096}"

    def el(self, h, e):
        blk, r = e // 4, e % 4
        q, kb = 2 * h + blk % 2, blk // 2
        return q, kb, r

    def sm_exp(self, h, e):
        q, kb, r = self.el(h, e)
        x = S + 8 * q + 4 * kb + r
        return f"v_exp_f32 v{x}, v{x}"

    def sm_cvt(self, h, e):
        q, kb, r = self.el(h, e)
        x = S + 8 * q + 4 * kb + r
        return f"v_cvt_pk_bf16_f32 v{P+4*q+2*kb+r//2}, v{x-1}, v{x}"

    def step(self, pos, first=False, var=0, last_in_body=False):
        c = self.c
        A = self.A
        mf = self.qk_seg(0) + self.pv_seg(1) + self.qk_seg(1) + self.pv_seg(0)
        sc = [[] for _ in range(64)]
        ds = [[] for _ in range(64)]
        va = [[] for _ in range(64)]
        for h, a in ((0, 8), (1, 40)):
            for e in range(16):
                i = a + 2 * e
                prev = i >= 64
                if not (first and prev):
                    va[i % 64].append(self.sm_exp(h, e))
                    if e % 2:
                        va[(i + 1) % 64].append(self.sm_cvt(h, e))
        grp = self.group((pos + 7) % 8, (pos + 6) % 8)
        dslots = [1, 5, 9, 13]
        rslots = list(range(17, 64, 2))
        zds = None
        reads = [self.rd_v(x, pos) for x in range(16)] + [self.rd_k(j, (pos + 1) % 8) for j in range(8)]
        for i, r in zip(rslots, reads):
            ds[i].append(r)
        if not c["nodma"]:
            sc[0].append(grp[0]); ds[dslots[0]].append(grp[1]); ds[dslots[1]].append(grp[2])
            sc[8].append(grp[3]); ds[dslots[2]].append(grp[4]); ds[dslots[3]].append(grp[5])
            if c["pat"]:
                sc[12].append(grp[6][0]); sc[14].append(grp[6][1]); sc[18].append(grp[6][2])
            else:
                sc[14].append(grp[6])
            sc[15].append("s_waitcnt vmcnt(24)")
        sc[47].append("s_waitcnt lgkmcnt(5)")
        sc[56].append("s_waitcnt lgkmcnt(4)")
        sc[63].append("s_waitcnt lgkmcnt(3)")
        if not first:
            sc[7].append("s_waitcnt lgkmcnt(0)")
        if c["noexp"]:
            va = [[x for x in l if not x.startswith("v_exp")] for l in va]
        if c["nocvt"]:
            va = [[x for x in l if not x.startswith("v_cvt")] for l in va]
        if c["nolds"] and not first:
            ds = [[x for x in l if not x.startswith("ds_read")] for l in ds]
        if c["halfdma"]:
            ds[dslots[1]] = []; ds[dslots[3]] = []
            sc[15] = ["s_waitcnt vmcnt(12)"]
        if c["trace"]:
            sc[10].append("s_memtime s[60:61]")
            sc[11].append("s_memrealtime s[62:63]")
            va[21].append(f"v_mov_b32_dpp v{TMP+8}, v{TMP+8} wave_shr:1 row_mask:0xf bank_mask:0xf")
            va[25].append(f"v_mov_b32_dpp v{TMP+10}, v{TMP+10} wave_shr:1 row_mask:0xf bank_mask:0xf")
            va[49].append(f"v_writelane_b32 v{TMP+8}, s60, 0")
            va[53].append(f"v_writelane_b32 v{TMP+10}, s62, 0")
        if last_in_body:
            sc[60].append(f"s_add_u32 s{S_CNT}, s{S_CNT}, 1")
            sc[62].append(f"s_cmp_lt_u32 s{S_CNT}, 8")
        for i in range(64):
            skip = first and i < 48
            if i == 16:
                if not first and not c["nors"]:
                    A(self.mf_rs(1))
                if not c["nobar"]:
                    A("s_barrier")
            if i == 48 and not c["nors"]:
                A(self.mf_rs(0))
            if i in (16, 32, 48, 0) and c["pad"]:
                n = c["pad"] // 4
                while n > 0:
                    A(f"s_nop {min(n, 16) - 1}")
                    n -= 16
            if not skip:
                A(mf[i])
            elif (va[i] and va[i][0].startswith("v_cvt") and not ds[i] and not sc[i]) or (ds[i] and "lds" in ds[i][0]):
                A("s_nop 0")
            A(sc[i]); A(ds[i]); A(va[i])
            if first and i == 47:
                A("s_nop 0")

    def rowmax(self, q, dst, tmp):
        s = S + 8 * q
        return [f"v_max3_f32 v{dst}, v{s}, v{s+1}, v{s+2}",
                f"v_max3_f32 v{dst}, v{dst}, v{s+3}, v{s+4}",
                f"v_max3_f32 v{dst}, v{dst}, v{s+5}, v{s+6}",
                f"v_max_f32 v{dst}, v{dst}, v{s+7}",
                f"v_mov_b32 v{tmp}, v{dst}", "s_nop 1",
                f"v_permlane16_swap_b32 v{dst}, v{tmp}",
                f"v_max_f32 v{dst}, v{dst}, v{tmp}",
                f"v_mov_b32 v{tmp}, v{dst}", "s_nop 1",
                f"v_permlane32_swap_b32 v{dst}, v{tmp}",
                f"v_max_f32 v{dst}, v{dst}, v{tmp}"]

    def rowmax2(self, h, dst):
        a = self.rowmax(2 * h, dst, dst + 2)
        b = self.rowmax(2 * h + 1, dst + 1, dst + 3)
        r = []
        for x, y in zip(a, b):
            if x.startswith("s_nop"):
                r.append("s_nop 0")
            else:
                r += [x, y]
        return r

    def setm(self, h, m):
        r = []
        for j in range(2):
            q = 2 * h + j
            for i in range(8):
                r.append(f"v_sub_f32 v{S+8*q+i}, v{S+8*q+i}, v{m+j}")
            for i in range(4):
                r.append(f"v_sub_f32 v{NEGM+4*q+i}, 0, v{m+j}")
        return r

    def scale_q(self, q, raw):
        r = []
        for i in range(16):
            t = 2 * (i % 4)
            r.append(f"v_lshlrev_b32 v{t}, 16, v{raw+i}")
            r.append(f"v_and_b32 v{t+1}, 0xffff0000, v{raw+i}")
            r.append(f"v_pk_mul_f32 {vr(t,2)}, {vr(t,2)}, {sr(S_C,2)}")
            r.append(f"v_cvt_pk_bf16_f32 v{8+i%4}, v{t}, v{t+1}")
            r.append(f"v_accvgpr_write_b32 a{AQ+16*q+i}, v{8+i%4}")
        return r

    def prologue(self):
        c = self.c
        A = self.A
        A("s_cmp_ge_u32 s2, 256\ns_cbranch_scc1 L_end")
        if c["stamps"]:
            A(stamp(0))
        A("s_load_dwordx4 s[4:7], s[0:1], 0\ns_load_dwordx4 s[8:11], s[0:1], 16")
        A(f"v_lshrrev_b32 v1, 6, v0\nv_and_b32 v{LANE}, 63, v0")
        A("v_readfirstlane_b32 s3, v1")
        A(f"v_lshrrev_b32 v2, 4, v{LANE}")
        A(f"v_and_b32 v3, 15, v{LANE}")
        A("v_xor_b32 v4, v3, v2\nv_lshlrev_b32 v4, 4, v4\nv_lshl_add_u32 v12, v2, 8, v4")
        for j in range(1, 4):
            A(f"v_xor_b32 v{12+j}, {j<<6}, v12")
        A(f"s_lshl_b32 s{S_WB}, s3, 11")
        for k in range(8):
            A(f"s_add_u32 s{M0K+k}, s{S_WB}, {k*8192}")
            A(f"s_add_u32 s{M0V+k}, s{S_WB}, {VBASE+k*8192}")
        A("s_and_b32 s12, s3, 1\ns_lshl_b32 s12, s12, 7")
        if c["pat"]:
            A(f"v_xor_b32 v6, v2, v1\nv_lshlrev_b32 v6, 8, v6\nv_lshl_add_u32 v6, v2, 15, v6")
            A(f"v_xor_b32 v16, s12, v4\nv_add_u32 v{KDA}, v16, v6\nv_xor_b32 v{KDB}, 64, v{KDA}")
            A(f"v_lshlrev_b32 v5, 1, v2\nv_xor_b32 v5, v3, v5\nv_lshl_add_u32 v{VDA}, v5, 4, v6")
            if c["rot"]:
                A(f"s_mul_i32 s{S_X}, s2, 0x9E3779B1\ns_lshr_b32 s{S_X}, s{S_X}, 11\ns_and_b32 s{S_T[0]}, s{S_X}, 0x67800")
            else:
                A(f"s_mov_b32 s{S_T[0]}, 0")
            A(f"s_or_b32 s{S_X}, s{S_T[0]}, 0x18000\ns_mov_b32 s{S_OFF}, 0x18800\ns_xor_b32 s{S_T[1]}, s{S_OFF}, s{S_X}")
        else:
            A(f"v_xor_b32 v16, s12, v12\nv_add_u32 v16, s{S_WB}, v16\nv_xor_b32 v17, 64, v16")
            A(f"v_add_u32 v{KDA}, 0x2000, v16\nv_add_u32 v{KDB}, 0x2000, v17")
            A(f"v_lshlrev_b32 v5, 1, v2\nv_xor_b32 v5, v3, v5\nv_lshlrev_b32 v5, 4, v5\nv_lshl_add_u32 v5, v2, 8, v5\nv_add_u32 v{VDA}, s{S_WB}, v5")
        A(f"v_xor_b32 v{VDB}, 0x80, v{VDA}")
        A("s_lshl_b32 s12, s2, 16\ns_lshl_b32 s13, s2, 19")
        A(f"s_lshl_b32 s{S_QO}, s3, 14")
        A("s_waitcnt lgkmcnt(0)")
        def srd(d, lo, off, size):
            A(f"s_add_u32 s{d}, s{lo}, s{off}\ns_addc_u32 s{d+1}, s{lo+1}, 0\ns_mov_b32 s{d+2}, {size}\ns_mov_b32 s{d+3}, 0x20000")
        srd(SRDQ, 4, 12, 65536)
        srd(SRDK, 6, 13, 524288)
        def qdma(h):
            for p in range(4 * h, 4 * h + 4):
                m = M0K + 4 + p if p < 4 else M0V + p
                i = 2 * p
                A(f"s_mov_b32 m0, s{m}")
                A(f"s_add_u32 s38, s{S_QO}, {i*1024}")
                A(self.dma(12 + i % 4, SRDQ, "s38", 0))
                A(self.dma(12 + (i + 1) % 4, SRDQ, "s38", 1024))
        qdma(0)
        A(f"s_mov_b32 m0, s{M0K}")
        srd(SRDV, 8, 13, 524288)
        if c["pat"]:
            A(self.dma(KDA, SRDK, f"s{S_T[0]}", 0))
            A(self.dma(KDB, SRDK, f"s{S_T[0]}", 1024))
            qdma(1)
        else:
            A(self.dma(16, SRDK, "0", 0))
            A(self.dma(17, SRDK, "0", 1024))
            qdma(1)
            A(f"s_mov_b32 s{S_OFF}, 0")
        for g in range(3):
            self.group_now(g + 1, g)
        srd(SRDO, 10, 12, 65536)
        A(f"v_lshl_add_u32 v{KADDR}, v3, 8, v4")
        for s in range(1, 4):
            A(f"v_xor_b32 v{KADDR+s}, {s<<6}, v{KADDR}")
        A(f"v_lshrrev_b32 v5, 2, v{LANE}\nv_and_b32 v6, 7, v5\nv_lshlrev_b32 v6, 5, v6\nv_lshl_add_u32 v6, v5, 8, v6")
        A(f"v_and_b32 v5, 3, v{LANE}\nv_lshl_add_u32 v6, v5, 3, v6\nv_add_u32 v{VADDR}, {VBASE}, v6")
        for b in range(1, 8):
            A(f"v_xor_b32 v{VADDR+b}, {b<<5}, v{VADDR}")
        A("v_lshrrev_b32 v5, 3, v3\nv_mul_u32_u24 v5, 6144, v5")
        A(f"v_add_u32 v5, s{S_WB}, v5")
        for s in range(4):
            A(f"v_add_u32 v{TMP+s}, v{KADDR+s}, v5")
            A(f"v_add_u32 v{TMP+4+s}, 0x10000, v{TMP+s}")
        cc = f2u(math.log2(math.e) / math.sqrt(128.0))
        A(f"s_mov_b32 s{S_C}, {cc:#x}\ns_mov_b32 s{S_C+1}, {cc:#x}")
        A(f"v_lshrrev_b32 v5, 4, v{LANE}\nv_xor_b32 v5, v5, v{LANE}\nv_and_b32 v5, 2, v5")
        A(f"v_cmp_eq_u32 vcc, 0, v5\nv_mov_b32 v6, 0x3f803f80\nv_and_b32 v5, 1, v{LANE}")
        for i in range(4):
            A(f"v_cndmask_b32 v{ONES+i}, 0, v6, vcc")
        A(f"v_cmp_eq_u32 vcc, 0, v5\nv_mov_b32 v6, 0x44444444\nv_mov_b32 v7, 0xeeeeeeee")
        A(f"v_cndmask_b32 v{IDX}, v7, v6, vcc")
        for i in range(128):
            A(f"v_mov_b32 v{O+i}, 0")
        for i in range(8):
            A(f"v_mov_b32 v{LS[0]+i}, 0")
        A(f"s_mov_b32 s{S_CNT}, 0")
        def qread(q, raw):
            for s in range(4):
                A(f"ds_read_b128 {vr(raw+4*s,4)}, v{TMP+4*(q//2)+s} offset:{32768+(q&1)*16384}")
        A("s_waitcnt vmcnt(26)")
        qread(0, S)
        A("s_waitcnt vmcnt(22)")
        qread(1, S + 16)
        A("s_waitcnt lgkmcnt(4)")
        A(self.scale_q(0, S))
        A("s_waitcnt vmcnt(20) lgkmcnt(0)\ns_barrier")
        if c["stamps"]:
            A(stamp(1))
            A("s_waitcnt lgkmcnt(0)")
        for j in range(8):
            A(self.rd_k(j, 0))
        self.group_now(4, 3)
        A(self.scale_q(1, S + 16))
        A("s_waitcnt vmcnt(20)")
        qread(2, P)
        A("s_waitcnt vmcnt(16)")
        qread(3, P + 16)
        A("s_waitcnt lgkmcnt(4)")
        sq = self.scale_q(2, P)
        qk = self.qk_seg(0, czero=True)
        for i in range(16):
            A(qk[i])
            A(sq[5 * i:5 * i + 5])
        A("s_waitcnt lgkmcnt(0)")
        self.group_now(5, 4)
        self.group_now(6, 5)
        A(self.scale_q(3, P + 16))
        A("s_nop 1")
        qk = self.qk_seg(1, czero=True)
        fill = self.rowmax2(0, 0) + self.setm(0, 0)
        n = len(fill)
        for i in range(16):
            A(qk[i])
            A(fill[n * i // 16:n * (i + 1) // 16])
        A("s_nop 7")
        A(self.rowmax2(1, 4))
        A(self.setm(1, 4))

    def lfin(self, h, dst):
        l = LS[h]
        return [f"v_add_f32 v{l}, v{l}, v{l+1}", f"v_add_f32 v{l+2}, v{l+2}, v{l+3}",
                f"v_rcp_f32 v{dst}, v{l}", f"v_rcp_f32 v{dst+2}, v{l+2}"]

    def norm_pack(self, h, rc, pk):
        r = []
        for j in range(2):
            q = 2 * h + j
            for dp in range(4):
                k = 4 * j + dp
                base = O + 32 * q + 8 * dp
                t = pk + 4 * k
                l = []
                for i in range(4):
                    l.append(f"v_pk_mul_f32 {vr(base+2*i,2)}, {vr(base+2*i,2)}, {vr(rc+2*j,2)} op_sel_hi:[1,0]")
                for i in (0, 2, 1, 3):
                    l.append(f"v_cvt_pk_bf16_f32 v{t+i}, v{base+2*i}, v{base+2*i+1}")
                sw = [f"v_permlane16_swap_b32 v{t}, v{t+2}", f"v_permlane16_swap_b32 v{t+1}, v{t+3}"]
                if self.c["epi"] == "lds":
                    out = f"ds_write_b128 v{8+(dp&1)}, {vr(t,4)} offset:{(dp>>1)*128+q*16384}"
                else:
                    so = ("0", "s56", "s57", "s58")[q]
                    o = f" offset:{dp*64}" if dp else ""
                    out = f"buffer_store_dwordx4 {vr(t,4)}, v14, {sr(SRDO,4)}, {so} offen{o} {self.c['stnt']}".rstrip()
                r.append((l, sw, out))
        return r

    def epi_addr(self):
        r = []
        r += [f"v_bfe_u32 v2, v{LANE}, 4, 1", f"v_lshrrev_b32 v3, 5, v{LANE}", "v_lshl_add_u32 v3, v2, 1, v3"]
        if self.c["epi"] == "lds":
            r += [f"v_and_b32 v2, 7, v{LANE}", "v_xor_b32 v3, v3, v2", "v_lshlrev_b32 v3, 4, v3",
                  "v_lshl_add_u32 v3, v2, 8, v3", f"v_bfe_u32 v2, v{LANE}, 3, 1", "v_lshl_add_u32 v3, v2, 13, v3",
                  f"v_add_u32 v8, s{S_WB}, v3", "v_xor_b32 v9, 64, v8"]
            r += [f"v_lshrrev_b32 v2, 4, v{LANE}", f"v_and_b32 v3, 15, v{LANE}", "v_xor_b32 v3, v3, v2", "v_lshlrev_b32 v3, 4, v3",
                  "v_lshl_add_u32 v3, v2, 8, v3", f"v_add_u32 v12, s{S_WB}, v3", "v_xor_b32 v13, 0x440, v12"]
            r += [f"v_lshlrev_b32 v14, 4, v{LANE}", f"v_add_u32 v14, s{S_QO}, v14"]
        else:
            r += ["v_lshlrev_b32 v3, 4, v3", f"v_and_b32 v2, 15, v{LANE}", "v_lshl_add_u32 v3, v2, 8, v3", f"v_add_u32 v14, s{S_QO}, v3"]
        return r

    def epi_reads(self, h, dst):
        return [f"ds_read_b128 {vr(dst+4*(i%8),4)}, v{12+i%2} offset:{(i//2)*8192}" for i in range(8 * h, 8 * h + 8)]

    def epi_stores(self, h, src):
        st = self.c["stnt"]
        r = []
        for i in range(8 * h, 8 * h + 8):
            so = ("0", "s56", "s57", "s58")[i // 4]
            o = f" offset:{(i%4)*1024}" if i % 4 else ""
            r.append(f"buffer_store_dwordx4 {vr(src+4*(i%8),4)}, v14, {sr(SRDO,4)}, {so} offen{o} {st}".rstrip())
        return r

    def emit_norm(self, bundles, extra=None):
        A = self.A
        n = len(bundles)
        for k in range(n + 1):
            if k < n:
                A(bundles[k][0][:2])
            else:
                A("s_nop 1")
            if k > 0:
                A(bundles[k - 1][1])
            if k < n:
                A(bundles[k][0][2:4])
            if k > 0:
                if extra:
                    A(extra(k - 1))
                A(bundles[k - 1][2])
            if k < n:
                A(bundles[k][0][4:])

    def tail(self):
        c = self.c
        A = self.A
        if c["stamps"]:
            A(stamp(2))
        A("s_mov_b32 s56, 0x1000\ns_mov_b32 s57, 0x2000\ns_mov_b32 s58, 0x3000")
        for e in (12, 13, 14, 15):
            A(self.sm_exp(1, e))
        A("s_nop 0")
        A(self.sm_cvt(1, 13)); A(self.sm_cvt(1, 15))
        A(self.lfin(0, 4))
        A(self.mf_rs(1))
        ea = self.epi_addr()
        pv = self.pv_seg(1)
        for i in range(16):
            A(pv[i])
            A(ea[2 * i:2 * i + 2])
        A(ea[32:])
        A("s_waitcnt vmcnt(0) lgkmcnt(0)")
        self.finish()

    def finish(self):
        A = self.A
        if self.c["epi"] == "direct":
            self.emit_norm(self.norm_pack(0, 4, S))
            A(self.lfin(1, 8))
            A("s_nop 0")
            self.emit_norm(self.norm_pack(1, 8, O))
            return
        self.emit_norm(self.norm_pack(0, 4, S))
        A(self.lfin(1, 16))
        A("s_waitcnt lgkmcnt(0)")
        A(self.epi_reads(0, O))
        st0 = self.epi_stores(0, O)
        def extra(k):
            if k < 2:
                return []
            return (["s_waitcnt lgkmcnt(2)"] if k == 2 else []) + [st0[k - 2]]
        self.emit_norm(self.norm_pack(1, 16, S), extra)
        A(st0[6:8])
        A("s_waitcnt lgkmcnt(0)")
        A(self.epi_reads(1, O + 32))
        st1 = self.epi_stores(1, O + 32)
        for k in range(8):
            A(f"s_waitcnt lgkmcnt({7-k})")
            A(st1[k])

    def check_and_slow(self):
        c = self.c
        A = self.A
        th = f2u(THRESH)
        A(f"s_mov_b32 s12, {th:#x}")
        A(f"v_cmp_ngt_f32 s[38:39], s12, v{LS[0]}")
        A(f"v_cmp_ngt_f32 s[14:15], s12, v{LS[0]+2}")
        A(f"v_cmp_ngt_f32 s[60:61], s12, v{LS[1]}")
        A(f"v_cmp_ngt_f32 vcc, s12, v{LS[1]+2}")
        A(f"v_and_b32 v2, 3, v{LANE}\nv_lshlrev_b32 v2, 11, v2\nv_add_u32 v2, {VBASE}, v2")
        A(f"v_mov_b32 v3, s{M0V}")
        A("s_or_b64 vcc, vcc, s[38:39]\ns_or_b64 vcc, vcc, s[14:15]\ns_or_b64 vcc, vcc, s[60:61]")
        A("s_cmp_lg_u64 vcc, 0")
        A("s_cselect_b32 s12, 1, 0")
        if c["noexp"] or c["nocvt"] or c["nolds"] or c["nors"] or c["halfdma"] or c["nodma"]:
            A("s_mov_b32 s12, 0")
        if c["force_slow"]:
            A("s_mov_b32 s12, 1")
        A("v_mov_b32 v5, s12")
        A("ds_write_b32 v3, v5")
        A("s_waitcnt lgkmcnt(0)\ns_barrier")
        A("ds_read_b32 v5, v2")
        A("s_waitcnt lgkmcnt(0)")
        A("v_cmp_ne_u32 vcc, 0, v5")
        if c["stamps"]:
            A("s_waitcnt vmcnt(0)")
            A(stamp(3))
            A("s_waitcnt lgkmcnt(0)")
        A("s_nop 4")
        A("s_cbranch_vccnz L_slow")
        if c["trace"]:
            A("s_load_dwordx2 s[56:57], s[0:1], 40\ns_waitcnt lgkmcnt(0)\ns_mov_b32 s58, 0x1000000\ns_mov_b32 s59, 0x20000")
            A("s_lshl_b32 s36, s2, 2\ns_add_u32 s36, s36, s3\ns_lshl_b32 s36, s36, 10\ns_add_u32 s36, s36, 0x100000")
            A(f"v_sub_u32 v2, 63, v{LANE}\nv_lshlrev_b32 v2, 4, v2\nv_mov_b32 v{TMP+11}, s70\nv_mov_b32 v{TMP+9}, v{TMP+8}")
            A(f"buffer_store_dwordx4 v[{TMP+8}:{TMP+11}], v2, s[56:59], s36 offen\ns_waitcnt vmcnt(0)")
        if c["spin"]:
            A("L_spin:\ns_memrealtime s[60:61]\ns_waitcnt lgkmcnt(0)\ns_sub_u32 s60, s60, s70")
            A(f"s_cmp_lt_u32 s60, {c['spin']}\ns_cbranch_scc1 L_spin")
        elif c["dbgt"]:
            A("s_load_dwordx2 s[56:57], s[0:1], 32\ns_waitcnt lgkmcnt(0)\ns_mov_b32 s58, 256\ns_mov_b32 s59, 0x20000")
            A("s_mov_b64 exec, 1")
            A("s_not_b32 s60, s70\nv_mov_b32 v0, s60\nv_mov_b32 v1, s74\nv_mov_b32 v2, s78\nv_mov_b32 v3, s82\nv_mov_b32 v4, s70")
            A("s_sub_u32 s60, s84, s72\nv_mov_b32 v5, s60\ns_sub_u32 s60, s82, s70\nv_mov_b32 v6, s60\nv_mov_b32 v7, 0")
            for j, op in ((0, "umax"), (1, "umax"), (2, "umax"), (3, "umax"), (4, "umax"), (5, "add"), (6, "add")):
                A(f"buffer_atomic_{op} v{j}, v7, s[56:59], 0 offen offset:{4*j}")
            A("s_waitcnt vmcnt(0)")
        elif c["stamps"]:
            A(stamp_flush(4, 3))
        A("L_end:\ns_endpgm")

    def slow(self):
        A = self.A
        M = TMP
        A("L_slow:")
        A("s_waitcnt vmcnt(0)")
        for i in range(128):
            A(f"v_mov_b32 v{O+i}, 0")
        for i in range(8):
            A(f"v_mov_b32 v{LS[0]+i}, 0")
        for q in range(4):
            A(f"v_mov_b32 v{M+q}, 0xff7fffff")
        kb = 0 if self.c["pat"] else 0x2000
        A(f"v_subrev_u32 v{TMP+4}, {kb}, v{KDA}\nv_subrev_u32 v{TMP+5}, {kb}, v{KDB}")
        A(f"s_mov_b32 s{S_OFF}, 0")
        A("L_slow_loop:")
        A("s_barrier")
        so = f"s{S_OFF}"
        A(f"s_mov_b32 m0, s{M0K}\ns_nop 0")
        A(self.dma(TMP + 4, SRDK, so, 0)); A(self.dma(TMP + 5, SRDK, so, 1024))
        A(f"s_mov_b32 m0, s{M0V}\ns_nop 0")
        A(self.dma(VDA, SRDV, so, 0)); A(self.dma(VDB, SRDV, so, 1024))
        A("s_waitcnt vmcnt(0)\ns_barrier")
        for j in range(8):
            A(self.rd_k(j, 0))
        A("s_waitcnt lgkmcnt(0)")
        for x in range(16):
            A(self.rd_v(x, 0))
            if x == 7:
                A("s_waitcnt lgkmcnt(0)")
        A(self.qk_seg(0, czero=True)); A(self.qk_seg(1, czero=True))
        A("s_nop 15")
        for q in range(4):
            h, j = q // 2, q % 2
            A(self.rowmax(q, 0, 1))
            A(f"v_max_f32 v0, v0, v{M+q}")
            A(f"v_sub_f32 v1, v{M+q}, v0")
            A("v_exp_f32 v1, v1")
            A(f"v_mov_b32 v{M+q}, v0")
            A(f"v_mul_f32 v{LS[h]+2*j}, v{LS[h]+2*j}, v1\nv_mul_f32 v{LS[h]+2*j+1}, v{LS[h]+2*j+1}, v1")
            for i in range(32):
                A(f"v_mul_f32 v{O+32*q+i}, v{O+32*q+i}, v1")
            for e in range(8):
                A(f"v_sub_f32 v{S+8*q+e}, v{S+8*q+e}, v0")
        for h in range(2):
            for e in range(16):
                A(self.sm_exp(h, e))
            A("s_nop 0")
            for e in range(1, 16, 2):
                A(self.sm_cvt(h, e))
        A("s_waitcnt lgkmcnt(0)\ns_nop 1")
        for h in range(2):
            A(self.mf_rs(h))
            A(self.pv_seg(h))
        A("s_nop 15")
        if self.c["pat"]:
            A(f"s_or_b32 s{S_OFF}, s{S_OFF}, 0x18000\ns_add_u32 s{S_OFF}, s{S_OFF}, 0x800\ns_andn2_b32 s{S_OFF}, s{S_OFF}, 0x18000")
        else:
            A(f"s_add_u32 s{S_OFF}, s{S_OFF}, 0x2000")
        A(f"s_cmp_lt_u32 s{S_OFF}, 0x80000")
        A("s_cbranch_scc1 L_slow_loop")
        A("s_barrier")
        A(self.epi_addr())
        A(self.lfin(0, 4))
        A("s_nop 0")
        self.finish()
        A("s_endpgm")

    def build(self):
        A = self.A
        self.prologue()
        self.step(0, first=True)
        A("s_branch L_pos1")
        f_end = len(self.out)
        A(".p2align 6")
        A("L_loop:")
        b0 = len(self.out)
        self.step(0)
        b1 = len(self.out)
        A("L_pos1:")
        for pos in range(1, 8):
            self.step(pos, last_in_body=(pos == 7))
        A("s_cbranch_scc1 L_loop")
        b2 = len(self.out)
        self.tail()
        self.check_and_slow()
        t_end = len(self.out)
        self.slow()
        o = self.out
        probs = []
        probs += hazard.check(o[:f_end] + o[b1:b2] + o[b0:b2] + o[b2:t_end], "main")
        sl = o[t_end:]
        i0 = sl.index("L_slow_loop:")
        i1 = sl.index("s_cbranch_scc1 L_slow_loop")
        probs += hazard.check(o[b2:t_end] + sl[:i1] + sl[i0:], "slow")
        probs = [p for p in probs if "s[60:63]" not in p]
        for p in probs[:(0 if self.c["trace"] else 20)]:
            print("HAZARD", p, file=sys.stderr)
        body = "\n".join(("" if (l.endswith(":") or l.startswith(".")) else "    ") + l for l in o)
        return wrap(body, lds=131072, nvgpr=384, accum=256, nsgpr=102,
                    extra_desc="  .amdhsa_float_denorm_mode_32 3\n")


if __name__ == "__main__":
    import ast
    out = sys.argv[1]
    kw = {}
    for a in sys.argv[2:]:
        k, v = a.split("=", 1)
        try:
            v = ast.literal_eval(v)
        except Exception:
            pass
        kw[k] = v
    open(out, "w").write(Gen(**kw).build())
```

```python
import sys, struct, math
from asmlib import *
import hazard


def f2u(x):
    return struct.unpack("<I", struct.pack("<f", x))[0]


DEFAULTS = dict(
    nt="nt",
    stnt="",
    stamps=False,
    nodma=False,
    nobar=False,
    force_slow=False,
    pv="snake",
    epi="lds",
    trace=False,
    warm="PT",
    depth=3,
    stl=("start", "k0", "loopend", "end"),
    spin=0,
    dbgt=False,
    pat=1,
    rot=1,
    noexp=False, nolds=False, nors=False, halfdma=False, nocvt=False,
    pad=0,
    stagger=0,
)

ONES = 20
IDX = 24
LANE = 25
KDA, KDB, VDA, VDB = 26, 27, 28, 29
KADDR = 32
VADDR = 36
LS = (44, 48)
P = 52
NEGM = 68
S = 96
O = 128
TMP = 84
AQ = 0
AK = 64
AV = 96
SRDQ, SRDK, SRDV, SRDO = 16, 20, 24, 28
S_CNT, S_OFF, S_C = 32, 33, 34
S_WB = 36
S_T = (66, 67)
S_X = 68
S_QO = 37
M0K, M0V = 40, 48
VBASE = 65536
THRESH = 2.0 ** 30


def vr(a, n):
    return f"v[{a}:{a+n-1}]"


def ar(a, n):
    return f"a[{a}:{a+n-1}]"


def sr(a, n):
    return f"s[{a}:{a+n-1}]"


class Gen:
    def __init__(self, **kw):
        self.c = dict(DEFAULTS)
        for k in kw:
            assert k in self.c, k
        self.c.update(kw)
        if not self.c["stamps"]:
            self.c["stl"] = ()
        self.out = []

    def st(self, name, wait=True):
        l = self.c["stl"]
        if name in l:
            self.A(stamp(l.index(name)))
            if wait:
                self.A("s_waitcnt lgkmcnt(0)")

    def A(self, s):
        if isinstance(s, (list, tuple)):
            for x in s:
                self.A(x)
            return
        for l in s.split("\n"):
            if l.strip():
                self.out.append(l.strip())

    def dma(self, voff, srd, soff, imm):
        nt = self.c["nt"]
        o = f" offset:{imm}" if imm else ""
        return f"buffer_load_dwordx4 v{voff}, {sr(srd,4)}, {soff} offen{o} {nt} lds".replace("  ", " ")

    def tnext(self, d):
        return [f"s_add_u32 s{S_OFF}, s{S_OFF}, 0x800", f"s_or_b32 s{S_OFF}, s{S_OFF}, 0x18000", f"s_xor_b32 s{d}, s{S_OFF}, s{S_X}"]

    def group(self, kslot, vslot):
        so = f"s{S_OFF}"
        if self.c["pat"]:
            sk, sv = S_T[kslot & 1], S_T[vslot & 1]
            return [
                f"s_mov_b32 m0, s{M0K+kslot}",
                self.dma(KDA, SRDK, f"s{sk}", 0),
                self.dma(KDB, SRDK, f"s{sk}", 1024),
                f"s_mov_b32 m0, s{M0V+vslot}",
                self.dma(VDA, SRDV, f"s{sv}", 0),
                self.dma(VDB, SRDV, f"s{sv}", 1024),
                self.tnext(sv),
            ]
        return [
            f"s_mov_b32 m0, s{M0K+kslot}",
            self.dma(KDA, SRDK, so, 0),
            self.dma(KDB, SRDK, so, 1024),
            f"s_mov_b32 m0, s{M0V+vslot}",
            self.dma(VDA, SRDV, so, 0),
            self.dma(VDB, SRDV, so, 1024),
            f"s_add_u32 s{S_OFF}, s{S_OFF}, 0x2000",
        ]

    def group_now(self, kslot, vslot):
        g = self.group(kslot, vslot)
        self.A([g[0], "s_nop 0", g[1], g[2], g[3], "s_nop 0", g[4], g[5], g[6]])

    def mf_qk(self, q, kb, s, czero=False):
        d = vr(S + 8 * q + 4 * kb, 4)
        c = ("0" if czero else vr(NEGM + 4 * q, 4)) if s == 0 else d
        return f"v_mfma_f32_16x16x32_bf16 {d}, {ar(AK+16*kb+4*s,4)}, {ar(AQ+16*q+4*s,4)}, {c}"

    def qk_seg(self, h, czero=False):
        return [self.mf_qk(q, kb, s, czero) for kb in range(2) for q in (2 * h, 2 * h + 1) for s in range(4)]

    def mf_pv(self, q, db):
        o = vr(O + 32 * q + 4 * db, 4)
        return f"v_mfma_f32_16x16x32_bf16 {o}, {ar(AV+4*db,4)}, {vr(P+4*q,4)}, {o}"

    def pv_seg(self, h):
        r = []
        for db in range(8):
            qs = (2 * h, 2 * h + 1)
            if self.c["pv"] == "snake" and db % 2:
                qs = qs[::-1]
            r += [self.mf_pv(q, db) for q in qs]
        return r

    def mf_rs(self, h):
        return f"v_smfmac_f32_16x16x64_bf16 {vr(LS[h],4)}, {vr(ONES,4)}, {vr(P+8*h,8)}, v{IDX}"

    def rd_k(self, j, slot):
        kb, s = j // 4, j % 4
        return f"ds_read_b128 {ar(AK+4*j,4)}, v{KADDR+s} offset:{slot*8192+kb*4096}"

    def rd_v(self, x, slot):
        db, kb = x // 2, x % 2
        return f"ds_read_b64_tr_b16 {ar(AV+4*db+2*kb,2)}, v{VADDR+db} offset:{slot*8192+kb*4096}"

    def el(self, h, e):
        blk, r = e // 4, e % 4
        q, kb = 2 * h + blk % 2, blk // 2
        return q, kb, r

    def sm_exp(self, h, e):
        q, kb, r = self.el(h, e)
        x = S + 8 * q + 4 * kb + r
        return f"v_exp_f32 v{x}, v{x}"

    def sm_cvt(self, h, e):
        q, kb, r = self.el(h, e)
        x = S + 8 * q + 4 * kb + r
        return f"v_cvt_pk_bf16_f32 v{P+4*q+2*kb+r//2}, v{x-1}, v{x}"

    def step(self, pos, first=False, var=0, last_in_body=False):
        c = self.c
        A = self.A
        mf = self.qk_seg(0) + self.pv_seg(1) + self.qk_seg(1) + self.pv_seg(0)
        sc = [[] for _ in range(64)]
        ds = [[] for _ in range(64)]
        va = [[] for _ in range(64)]
        for h, a in ((0, 8), (1, 40)):
            for e in range(16):
                i = a + 2 * e
                prev = i >= 64
                if not (first and prev):
                    va[i % 64].append(self.sm_exp(h, e))
                    if e % 2:
                        va[(i + 1) % 64].append(self.sm_cvt(h, e))
        D = c["depth"]
        grp = self.group((pos + D + 1) % 8, (pos + D) % 8)
        dslots = [1, 5, 9, 13]
        rslots = list(range(17, 64, 2))
        zds = None
        reads = [self.rd_v(x, pos) for x in range(16)] + [self.rd_k(j, (pos + 1) % 8) for j in range(8)]
        for i, r in zip(rslots, reads):
            ds[i].append(r)
        if not c["nodma"]:
            sc[0].append(grp[0]); ds[dslots[0]].append(grp[1]); ds[dslots[1]].append(grp[2])
            sc[8].append(grp[3]); ds[dslots[2]].append(grp[4]); ds[dslots[3]].append(grp[5])
            if c["pat"]:
                sc[12].append(grp[6][0]); sc[14].append(grp[6][1]); sc[18].append(grp[6][2])
            else:
                sc[14].append(grp[6])
            sc[15].append(f"s_waitcnt vmcnt({4*D})")
        sc[47].append("s_waitcnt lgkmcnt(5)")
        sc[56].append("s_waitcnt lgkmcnt(4)")
        sc[63].append("s_waitcnt lgkmcnt(3)")
        if not first:
            sc[7].append("s_waitcnt lgkmcnt(0)")
        if c["noexp"]:
            va = [[x for x in l if not x.startswith("v_exp")] for l in va]
        if c["nocvt"]:
            va = [[x for x in l if not x.startswith("v_cvt")] for l in va]
        if c["nolds"] and not first:
            ds = [[x for x in l if not x.startswith("ds_read")] for l in ds]
        if c["halfdma"]:
            ds[dslots[1]] = []; ds[dslots[3]] = []
            sc[15] = [f"s_waitcnt vmcnt({2*D})"]
        if c["trace"]:
            sc[10].append("s_memtime s[60:61]")
            sc[11].append("s_memrealtime s[62:63]")
            va[21].append(f"v_mov_b32_dpp v{TMP+8}, v{TMP+8} wave_shr:1 row_mask:0xf bank_mask:0xf")
            va[25].append(f"v_mov_b32_dpp v{TMP+10}, v{TMP+10} wave_shr:1 row_mask:0xf bank_mask:0xf")
            va[49].append(f"v_writelane_b32 v{TMP+8}, s60, 0")
            va[53].append(f"v_writelane_b32 v{TMP+10}, s62, 0")
        if last_in_body:
            sc[60].append(f"s_add_u32 s{S_CNT}, s{S_CNT}, 1")
            sc[62].append(f"s_cmp_lt_u32 s{S_CNT}, 8")
        if first:
            mf[48:] = [m[:m.rindex(",")] + ", 0" for m in mf[48:]]
            self.first_lists = (sc, ds, va)
        for i in range(48 if first else 0, 64):
            if i == 16:
                if not first and not c["nors"]:
                    A(self.mf_rs(1))
                if not c["nobar"]:
                    A("s_barrier")
            if i == 48 and not c["nors"]:
                A(self.mf_rs(0))
            if i in (16, 32, 48, 0) and c["pad"]:
                n = c["pad"] // 4
                while n > 0:
                    A(f"s_nop {min(n, 16) - 1}")
                    n -= 16
            A(mf[i])
            A(sc[i]); A(ds[i]); A(va[i])

    def rowmax(self, q, dst, tmp):
        s = S + 8 * q
        return [f"v_max3_f32 v{dst}, v{s}, v{s+1}, v{s+2}",
                f"v_max3_f32 v{dst}, v{dst}, v{s+3}, v{s+4}",
                f"v_max3_f32 v{dst}, v{dst}, v{s+5}, v{s+6}",
                f"v_max_f32 v{dst}, v{dst}, v{s+7}",
                f"v_mov_b32 v{tmp}, v{dst}", "s_nop 1",
                f"v_permlane16_swap_b32 v{dst}, v{tmp}",
                f"v_max_f32 v{dst}, v{dst}, v{tmp}",
                f"v_mov_b32 v{tmp}, v{dst}", "s_nop 1",
                f"v_permlane32_swap_b32 v{dst}, v{tmp}",
                f"v_max_f32 v{dst}, v{dst}, v{tmp}"]

    def rowmax2(self, h, dst):
        a = self.rowmax(2 * h, dst, dst + 2)
        b = self.rowmax(2 * h + 1, dst + 1, dst + 3)
        r = []
        for x, y in zip(a, b):
            if x.startswith("s_nop"):
                r.append("s_nop 0")
            else:
                r += [x, y]
        return r

    def setm(self, h, m):
        r = []
        for j in range(2):
            q = 2 * h + j
            for i in range(8):
                r.append(f"v_sub_f32 v{S+8*q+i}, v{S+8*q+i}, v{m+j}")
            for i in range(4):
                r.append(f"v_sub_f32 v{NEGM+4*q+i}, 0, v{m+j}")
        return r

    def scale_q(self, q, raw):
        r = []
        for i in range(16):
            t = 2 * (i % 4)
            r.append(f"v_lshlrev_b32 v{t}, 16, v{raw+i}")
            r.append(f"v_and_b32 v{t+1}, 0xffff0000, v{raw+i}")
            r.append(f"v_pk_mul_f32 {vr(t,2)}, {vr(t,2)}, {sr(S_C,2)}")
            r.append(f"v_cvt_pk_bf16_f32 v{8+i%4}, v{t}, v{t+1}")
            r.append(f"v_accvgpr_write_b32 a{AQ+16*q+i}, v{8+i%4}")
        return r

    def prologue(self):
        c = self.c
        A = self.A
        D = c["depth"]
        RAW = O
        A("s_cmp_ge_u32 s2, 256\ns_cbranch_scc1 L_end")
        self.st("start", False)
        A("s_load_dwordx4 s[4:7], s[0:1], 0\ns_load_dwordx4 s[8:11], s[0:1], 16")
        A(f"v_lshrrev_b32 v1, 6, v0\nv_and_b32 v{LANE}, 63, v0")
        A("v_readfirstlane_b32 s3, v1")
        A(f"v_lshrrev_b32 v2, 4, v{LANE}")
        A(f"v_and_b32 v3, 15, v{LANE}")
        A("v_xor_b32 v4, v3, v2\nv_lshlrev_b32 v4, 4, v4\nv_lshl_add_u32 v12, v2, 8, v4")
        for j in range(1, 4):
            A(f"v_xor_b32 v{12+j}, {j<<6}, v12")
        A(f"s_lshl_b32 s{S_WB}, s3, 11")
        A("s_and_b32 s12, s3, 1\ns_lshl_b32 s12, s12, 7")
        A(f"v_xor_b32 v6, v2, v1\nv_lshlrev_b32 v6, 8, v6\nv_lshl_add_u32 v6, v2, 15, v6")
        A(f"v_xor_b32 v16, s12, v4\nv_add_u32 v{KDA}, v16, v6\nv_xor_b32 v{KDB}, 64, v{KDA}")
        if c["rot"]:
            A(f"s_mul_i32 s{S_X}, s2, 0x9E3779B1\ns_lshr_b32 s{S_X}, s{S_X}, 11\ns_and_b32 s{S_T[0]}, s{S_X}, 0x67800")
        else:
            A(f"s_mov_b32 s{S_T[0]}, 0")
        A("s_lshl_b32 s12, s2, 16\ns_lshl_b32 s13, s2, 19")
        A(f"s_lshl_b32 s{S_QO}, s3, 14")
        for k in range(8):
            A(f"s_add_u32 s{M0K+k}, s{S_WB}, {k*8192}")
        A(f"s_mov_b32 m0, s{M0K}")
        A(f"s_mov_b32 s{SRDK+2}, 524288\ns_mov_b32 s{SRDK+3}, 0x20000\ns_mov_b32 s{SRDQ+2}, 65536\ns_mov_b32 s{SRDQ+3}, 0x20000")
        A("s_waitcnt lgkmcnt(0)")
        self.st("karg", False)
        def base(d, lo, off):
            A(f"s_add_u32 s{d}, s{lo}, s{off}\ns_addc_u32 s{d+1}, s{lo+1}, 0")
        def qpiece(p):
            m = M0K + 4 + p if p < 4 else M0V + p
            i = 2 * p
            return [f"s_mov_b32 m0, s{m}", f"s_add_u32 s38, s{S_QO}, {i*1024}",
                    self.dma(12 + i % 4, SRDQ, "s38", 0), self.dma(12 + (i + 1) % 4, SRDQ, "s38", 1024)]
        base(SRDK, 6, 13)
        A(self.dma(KDA, SRDK, f"s{S_T[0]}", 0))
        A(self.dma(KDB, SRDK, f"s{S_T[0]}", 1024))
        base(SRDQ, 4, 12)
        for p in range(4):
            A(qpiece(p))
        for k in range(8):
            A(f"s_add_u32 s{M0V+k}, s{S_WB}, {VBASE+k*8192}")
        A(qpiece(4))
        self.st("issued", False)
        if c["warm"]:
            A("s_getpc_b64 s[14:15]\nL_pc:")
            A(f"s_lshr_b32 s12, s2, 3\ns_lshl_b32 s12, s12, 2\ns_add_u32 s12, s12, s3\ns_lshl_b32 s12, s12, 6")
            rng = {"P": ("L_pc", "L_loop"), "L": ("L_loop", "L_tail"), "T": ("L_tail", "L_end"), "H": ("L_pos5", "L_tail"), "h": ("L_loop", "L_pos5")}
            for j, k in enumerate(c["warm"]):
                lo, hi = rng[k]
                A(f"s_min_u32 s13, s12, {hi}-{lo}\ns_add_u32 s13, s13, {lo}-L_pc\ns_load_dword s{60+j}, s[14:15], s13")
            A("s_lshl_b32 s12, s2, 16\ns_lshl_b32 s13, s2, 19")
        base(SRDV, 8, 13)
        base(SRDO, 10, 12)
        A(f"s_mov_b32 s{SRDV+2}, 524288\ns_mov_b32 s{SRDV+3}, 0x20000\ns_mov_b32 s{SRDO+2}, 65536\ns_mov_b32 s{SRDO+3}, 0x20000")
        A(f"s_or_b32 s{S_X}, s{S_T[0]}, 0x18000\ns_mov_b32 s{S_OFF}, 0x18800\ns_xor_b32 s{S_T[1]}, s{S_OFF}, s{S_X}")
        A(f"v_lshlrev_b32 v5, 1, v2\nv_xor_b32 v5, v3, v5\nv_lshl_add_u32 v{VDA}, v5, 4, v6")
        A(f"v_xor_b32 v{VDB}, 0x80, v{VDA}")
        A(f"v_lshl_add_u32 v{KADDR}, v3, 8, v4")
        for s in range(1, 4):
            A(f"v_xor_b32 v{KADDR+s}, {s<<6}, v{KADDR}")
        A("v_lshrrev_b32 v5, 3, v3\nv_mul_u32_u24 v5, 6144, v5")
        A(f"v_add_u32 v5, s{S_WB}, v5")
        for s in range(4):
            A(f"v_add_u32 v{TMP+s}, v{KADDR+s}, v5")
            A(f"v_add_u32 v{TMP+4+s}, 0x10000, v{TMP+s}")
        cc = f2u(math.log2(math.e) / math.sqrt(128.0))
        A(f"s_mov_b32 s{S_C}, {cc:#x}\ns_mov_b32 s{S_C+1}, {cc:#x}")
        A(f"v_lshrrev_b32 v5, 2, v{LANE}\nv_and_b32 v6, 7, v5\nv_lshlrev_b32 v6, 5, v6\nv_lshl_add_u32 v6, v5, 8, v6")
        A(f"v_and_b32 v5, 3, v{LANE}\nv_lshl_add_u32 v6, v5, 3, v6\nv_add_u32 v{VADDR}, {VBASE}, v6")
        for b in range(1, 8):
            A(f"v_xor_b32 v{VADDR+b}, {b<<5}, v{VADDR}")
        A(f"v_lshrrev_b32 v5, 4, v{LANE}\nv_xor_b32 v5, v5, v{LANE}\nv_and_b32 v5, 2, v5")
        A(f"v_cmp_eq_u32 vcc, 0, v5\nv_mov_b32 v6, 0x3f803f80\nv_and_b32 v5, 1, v{LANE}")
        for i in range(4):
            A(f"v_cndmask_b32 v{ONES+i}, 0, v6, vcc")
        A(f"v_cmp_eq_u32 vcc, 0, v5\nv_mov_b32 v6, 0x44444444\nv_mov_b32 v7, 0xeeeeeeee")
        A(f"v_cndmask_b32 v{IDX}, v7, v6, vcc")
        for i in range(64, 128):
            A(f"v_mov_b32 v{O+i}, 0")
        for i in range(8):
            A(f"v_mov_b32 v{LS[0]+i}, 0")
        A(f"s_mov_b32 s{S_CNT}, 0")
        def qread(q):
            for s in range(4):
                A(f"ds_read_b128 {vr(RAW+16*q+4*s,4)}, v{TMP+4*(q//2)+s} offset:{32768+(q&1)*16384}")
        self.st("init")
        A("s_waitcnt vmcnt(6) lgkmcnt(0)")
        self.st("q0")
        qread(0)
        for p in (5, 6, 7):
            A(qpiece(p))
        A("s_barrier")
        for j in range(8):
            A(self.rd_k(j, 0))
        A("s_waitcnt lgkmcnt(8)")
        A(self.scale_q(0, RAW))
        A("s_waitcnt vmcnt(8)")
        self.st("k0")
        qread(1)
        self.group_now(1, 0)
        A("s_waitcnt lgkmcnt(0)")
        A(self.scale_q(1, RAW + 16))
        A("s_waitcnt vmcnt(8)")
        qread(2)
        self.group_now(2, 1)
        A("s_waitcnt lgkmcnt(0)")
        sq = self.scale_q(2, RAW + 32)
        qk = self.qk_seg(0, czero=True)
        for i in range(16):
            A(qk[i])
            A(sq[5 * i:5 * i + 5])
        A("s_waitcnt vmcnt(8)")
        self.st("q3")
        qread(3)
        if D >= 3:
            self.group_now(3, 2)
        A(self.rowmax2(0, 0))
        A(self.setm(0, 0))
        A("s_waitcnt lgkmcnt(0)")
        A(self.scale_q(3, RAW + 48))
        qk = self.qk_seg(1, czero=True)
        A(self.sm_exp(0, 0))
        for i in range(16):
            A(qk[i])
            if i < 15:
                A(self.sm_exp(0, i + 1))
            if i % 2:
                A(self.sm_cvt(0, i))
        late = 0
        for g in range(3, D):
            late += 1
        if c["trace"]:
            A("s_memtime s[60:61]\ns_memrealtime s[62:63]")
        A(f"s_waitcnt vmcnt({4*(min(D,3)-1)})\ns_barrier")
        self.st("proend")
        for x in range(8):
            A(self.rd_v(x, 0))
        for g in range(min(D, 3), D + 1):
            self.group_now((g + 1) % 8, g)
        for x in range(8, 16):
            A(self.rd_v(x, 0))
        A(self.rowmax2(1, 4))
        A(self.setm(1, 4))
        for e in range(4):
            A(self.sm_exp(1, e))
            if e == 2:
                A(self.sm_cvt(1, 1))
        A("s_waitcnt lgkmcnt(5)")
        A(self.sm_cvt(1, 3))

    def lfin(self, h, dst):
        l = LS[h]
        return [f"v_add_f32 v{l}, v{l}, v{l+1}", f"v_add_f32 v{l+2}, v{l+2}, v{l+3}",
                f"v_rcp_f32 v{dst}, v{l}", f"v_rcp_f32 v{dst+2}, v{l+2}"]

    def norm_pack(self, h, rc, pk):
        r = []
        for j in range(2):
            q = 2 * h + j
            for dp in range(4):
                k = 4 * j + dp
                base = O + 32 * q + 8 * dp
                t = pk + 4 * k
                l = []
                for i in range(4):
                    l.append(f"v_pk_mul_f32 {vr(base+2*i,2)}, {vr(base+2*i,2)}, {vr(rc+2*j,2)} op_sel_hi:[1,0]")
                for i in (0, 2, 1, 3):
                    l.append(f"v_cvt_pk_bf16_f32 v{t+i}, v{base+2*i}, v{base+2*i+1}")
                sw = [f"v_permlane16_swap_b32 v{t}, v{t+2}", f"v_permlane16_swap_b32 v{t+1}, v{t+3}"]
                if self.c["epi"] == "lds":
                    out = f"ds_write_b128 v{8+(dp&1)}, {vr(t,4)} offset:{(dp>>1)*128+q*16384}"
                else:
                    so = ("0", "s56", "s57", "s58")[q]
                    o = f" offset:{dp*64}" if dp else ""
                    out = f"buffer_store_dwordx4 {vr(t,4)}, v14, {sr(SRDO,4)}, {so} offen{o} {self.c['stnt']}".rstrip()
                r.append((l, sw, out))
        return r

    def epi_addr(self):
        r = []
        r += [f"v_bfe_u32 v2, v{LANE}, 4, 1", f"v_lshrrev_b32 v3, 5, v{LANE}", "v_lshl_add_u32 v3, v2, 1, v3"]
        if self.c["epi"] == "lds":
            r += [f"v_and_b32 v2, 7, v{LANE}", "v_xor_b32 v3, v3, v2", "v_lshlrev_b32 v3, 4, v3",
                  "v_lshl_add_u32 v3, v2, 8, v3", f"v_bfe_u32 v2, v{LANE}, 3, 1", "v_lshl_add_u32 v3, v2, 13, v3",
                  f"v_add_u32 v8, s{S_WB}, v3", "v_xor_b32 v9, 64, v8"]
            r += [f"v_lshrrev_b32 v2, 4, v{LANE}", f"v_and_b32 v3, 15, v{LANE}", "v_xor_b32 v3, v3, v2", "v_lshlrev_b32 v3, 4, v3",
                  "v_lshl_add_u32 v3, v2, 8, v3", f"v_add_u32 v12, s{S_WB}, v3", "v_xor_b32 v13, 0x440, v12"]
            r += [f"v_lshlrev_b32 v14, 4, v{LANE}", f"v_add_u32 v14, s{S_QO}, v14"]
        else:
            r += ["v_lshlrev_b32 v3, 4, v3", f"v_and_b32 v2, 15, v{LANE}", "v_lshl_add_u32 v3, v2, 8, v3", f"v_add_u32 v14, s{S_QO}, v3"]
        return r

    def epi_reads(self, h, dst):
        return [f"ds_read_b128 {vr(dst+4*(i%8),4)}, v{12+i%2} offset:{(i//2)*8192}" for i in range(8 * h, 8 * h + 8)]

    def epi_stores(self, h, src):
        st = self.c["stnt"]
        r = []
        for i in range(8 * h, 8 * h + 8):
            so = ("0", "s56", "s57", "s58")[i // 4]
            o = f" offset:{(i%4)*1024}" if i % 4 else ""
            r.append(f"buffer_store_dwordx4 {vr(src+4*(i%8),4)}, v14, {sr(SRDO,4)}, {so} offen{o} {st}".rstrip())
        return r

    def emit_norm(self, bundles, extra=None):
        A = self.A
        n = len(bundles)
        for k in range(n + 1):
            if k < n:
                A(bundles[k][0][:2])
            else:
                A("s_nop 1")
            if k > 0:
                A(bundles[k - 1][1])
            if k < n:
                A(bundles[k][0][2:4])
            if k > 0:
                if extra:
                    A(extra(k - 1))
                A(bundles[k - 1][2])
            if k < n:
                A(bundles[k][0][4:])

    def tail(self):
        c = self.c
        A = self.A
        self.st("loopend", False)
        A("s_mov_b32 s56, 0x1000\ns_mov_b32 s57, 0x2000\ns_mov_b32 s58, 0x3000")
        for e in (12, 13, 14, 15):
            A(self.sm_exp(1, e))
        A("s_nop 0")
        A(self.sm_cvt(1, 13)); A(self.sm_cvt(1, 15))
        A(self.lfin(0, 4))
        A(self.mf_rs(1))
        ea = self.epi_addr()
        pv = self.pv_seg(1)
        for i in range(16):
            A(pv[i])
            A(ea[2 * i:2 * i + 2])
        A(ea[32:])
        A("s_waitcnt vmcnt(0) lgkmcnt(0)")
        self.st("lastpv")
        self.finish()
        self.st("stissued")

    def finish(self):
        A = self.A
        if self.c["epi"] == "direct":
            self.emit_norm(self.norm_pack(0, 4, S))
            A(self.lfin(1, 8))
            A("s_nop 0")
            self.emit_norm(self.norm_pack(1, 8, O))
            return
        self.emit_norm(self.norm_pack(0, 4, S))
        A(self.lfin(1, 16))
        A("s_waitcnt lgkmcnt(0)")
        A(self.epi_reads(0, O))
        st0 = self.epi_stores(0, O)
        def extra(k):
            if k < 2:
                return []
            return (["s_waitcnt lgkmcnt(2)"] if k == 2 else []) + [st0[k - 2]]
        self.emit_norm(self.norm_pack(1, 16, S), extra)
        A(st0[6:8])
        A("s_waitcnt lgkmcnt(0)")
        A(self.epi_reads(1, O + 32))
        st1 = self.epi_stores(1, O + 32)
        for k in range(8):
            A(f"s_waitcnt lgkmcnt({7-k})")
            A(st1[k])

    def check_and_slow(self):
        c = self.c
        A = self.A
        th = f2u(THRESH)
        A(f"s_mov_b32 s12, {th:#x}")
        A(f"v_cmp_ngt_f32 s[38:39], s12, v{LS[0]}")
        A(f"v_cmp_ngt_f32 s[14:15], s12, v{LS[0]+2}")
        A(f"v_cmp_ngt_f32 s[60:61], s12, v{LS[1]}")
        A(f"v_cmp_ngt_f32 vcc, s12, v{LS[1]+2}")
        A(f"v_and_b32 v2, 3, v{LANE}\nv_lshlrev_b32 v2, 11, v2\nv_add_u32 v2, {VBASE}, v2")
        A(f"v_mov_b32 v3, s{M0V}")
        A("s_or_b64 vcc, vcc, s[38:39]\ns_or_b64 vcc, vcc, s[14:15]\ns_or_b64 vcc, vcc, s[60:61]")
        A("s_cmp_lg_u64 vcc, 0")
        A("s_cselect_b32 s12, 1, 0")
        if c["noexp"] or c["nocvt"] or c["nolds"] or c["nors"] or c["halfdma"] or c["nodma"]:
            A("s_mov_b32 s12, 0")
        if c["force_slow"]:
            A("s_mov_b32 s12, 1")
        A("v_mov_b32 v5, s12")
        A("ds_write_b32 v3, v5")
        A("s_waitcnt lgkmcnt(0)\ns_barrier")
        A("ds_read_b32 v5, v2")
        A("s_waitcnt lgkmcnt(0)")
        A("v_cmp_ne_u32 vcc, 0, v5")
        if c["stamps"]:
            A("s_waitcnt vmcnt(0)")
            self.st("end")
        A("s_nop 4")
        A("s_cbranch_vccnz L_slow")
        if c["trace"]:
            A("s_load_dwordx2 s[56:57], s[0:1], 40\ns_waitcnt lgkmcnt(0)\ns_mov_b32 s58, 0x1000000\ns_mov_b32 s59, 0x20000")
            A("s_lshl_b32 s36, s2, 2\ns_add_u32 s36, s36, s3\ns_lshl_b32 s36, s36, 10\ns_add_u32 s36, s36, 0x100000")
            A(f"v_sub_u32 v2, 63, v{LANE}\nv_lshlrev_b32 v2, 4, v2\nv_mov_b32 v{TMP+11}, s70\nv_mov_b32 v{TMP+9}, v{TMP+8}")
            A(f"buffer_store_dwordx4 v[{TMP+8}:{TMP+11}], v2, s[56:59], s36 offen\ns_waitcnt vmcnt(0)")
        if c["spin"]:
            A("L_spin:\ns_memrealtime s[60:61]\ns_waitcnt lgkmcnt(0)\ns_sub_u32 s60, s60, s70")
            A(f"s_cmp_lt_u32 s60, {c['spin']}\ns_cbranch_scc1 L_spin")
        elif c["dbgt"]:
            A("s_load_dwordx2 s[56:57], s[0:1], 32\ns_waitcnt lgkmcnt(0)\ns_mov_b32 s58, 256\ns_mov_b32 s59, 0x20000")
            A("s_mov_b64 exec, 1")
            A("s_not_b32 s60, s70\nv_mov_b32 v0, s60\nv_mov_b32 v1, s74\nv_mov_b32 v2, s78\nv_mov_b32 v3, s82\nv_mov_b32 v4, s70")
            A("s_sub_u32 s60, s84, s72\nv_mov_b32 v5, s60\ns_sub_u32 s60, s82, s70\nv_mov_b32 v6, s60\nv_mov_b32 v7, 0")
            for j, op in ((0, "umax"), (1, "umax"), (2, "umax"), (3, "umax"), (4, "umax"), (5, "add"), (6, "add")):
                A(f"buffer_atomic_{op} v{j}, v7, s[56:59], 0 offen offset:{4*j}")
            A("s_waitcnt vmcnt(0)")
        elif c["stamps"]:
            A(stamp_flush(len(c["stl"]), 3))
        A("L_end:\ns_endpgm")

    def slow(self):
        A = self.A
        M = TMP
        A("L_slow:")
        A("s_waitcnt vmcnt(0)")
        for i in range(128):
            A(f"v_mov_b32 v{O+i}, 0")
        for i in range(8):
            A(f"v_mov_b32 v{LS[0]+i}, 0")
        for q in range(4):
            A(f"v_mov_b32 v{M+q}, 0xff7fffff")
        kb = 0 if self.c["pat"] else 0x2000
        A(f"v_subrev_u32 v{TMP+4}, {kb}, v{KDA}\nv_subrev_u32 v{TMP+5}, {kb}, v{KDB}")
        A(f"s_mov_b32 s{S_OFF}, 0")
        A("L_slow_loop:")
        A("s_barrier")
        so = f"s{S_OFF}"
        A(f"s_mov_b32 m0, s{M0K}\ns_nop 0")
        A(self.dma(TMP + 4, SRDK, so, 0)); A(self.dma(TMP + 5, SRDK, so, 1024))
        A(f"s_mov_b32 m0, s{M0V}\ns_nop 0")
        A(self.dma(VDA, SRDV, so, 0)); A(self.dma(VDB, SRDV, so, 1024))
        A("s_waitcnt vmcnt(0)\ns_barrier")
        for j in range(8):
            A(self.rd_k(j, 0))
        A("s_waitcnt lgkmcnt(0)")
        for x in range(16):
            A(self.rd_v(x, 0))
            if x == 7:
                A("s_waitcnt lgkmcnt(0)")
        A(self.qk_seg(0, czero=True)); A(self.qk_seg(1, czero=True))
        A("s_nop 15")
        for q in range(4):
            h, j = q // 2, q % 2
            A(self.rowmax(q, 0, 1))
            A(f"v_max_f32 v0, v0, v{M+q}")
            A(f"v_sub_f32 v1, v{M+q}, v0")
            A("v_exp_f32 v1, v1")
            A(f"v_mov_b32 v{M+q}, v0")
            A(f"v_mul_f32 v{LS[h]+2*j}, v{LS[h]+2*j}, v1\nv_mul_f32 v{LS[h]+2*j+1}, v{LS[h]+2*j+1}, v1")
            for i in range(32):
                A(f"v_mul_f32 v{O+32*q+i}, v{O+32*q+i}, v1")
            for e in range(8):
                A(f"v_sub_f32 v{S+8*q+e}, v{S+8*q+e}, v0")
        for h in range(2):
            for e in range(16):
                A(self.sm_exp(h, e))
            A("s_nop 0")
            for e in range(1, 16, 2):
                A(self.sm_cvt(h, e))
        A("s_waitcnt lgkmcnt(0)\ns_nop 1")
        for h in range(2):
            A(self.mf_rs(h))
            A(self.pv_seg(h))
        A("s_nop 15")
        if self.c["pat"]:
            A(f"s_or_b32 s{S_OFF}, s{S_OFF}, 0x18000\ns_add_u32 s{S_OFF}, s{S_OFF}, 0x800\ns_andn2_b32 s{S_OFF}, s{S_OFF}, 0x18000")
        else:
            A(f"s_add_u32 s{S_OFF}, s{S_OFF}, 0x2000")
        A(f"s_cmp_lt_u32 s{S_OFF}, 0x80000")
        A("s_cbranch_scc1 L_slow_loop")
        A("s_barrier")
        A(self.epi_addr())
        A(self.lfin(0, 4))
        A("s_nop 0")
        self.finish()
        A("s_endpgm")

    def build(self):
        A = self.A
        self.prologue()
        self.step(0, first=True)
        A("s_branch L_pos1")
        f_end = len(self.out)
        A(".p2align 6")
        A("L_loop:")
        b0 = len(self.out)
        self.step(0)
        b1 = len(self.out)
        A("L_pos1:")
        for pos in range(1, 8):
            if pos == 5:
                A("L_pos5:")
            self.step(pos, last_in_body=(pos == 7))
        A("s_cbranch_scc1 L_loop")
        b2 = len(self.out)
        A("L_tail:")
        self.tail()
        self.check_and_slow()
        t_end = len(self.out)
        self.slow()
        o = self.out
        probs = []
        probs += hazard.check(o[:f_end] + o[b1:b2] + o[b0:b2] + o[b2:t_end], "main")
        sl = o[t_end:]
        i0 = sl.index("L_slow_loop:")
        i1 = sl.index("s_cbranch_scc1 L_slow_loop")
        probs += hazard.check(o[b2:t_end] + sl[:i1] + sl[i0:], "slow")
        probs = [p for p in probs if "s[60:63]" not in p]
        for p in probs[:(0 if self.c["trace"] else 20)]:
            print("HAZARD", p, file=sys.stderr)
        body = "\n".join(("" if (l.endswith(":") or l.startswith(".")) else "    ") + l for l in o)
        return wrap(body, lds=131072, nvgpr=384, accum=256, nsgpr=102,
                    extra_desc="  .amdhsa_float_denorm_mode_32 3\n")


if __name__ == "__main__":
    import ast
    out = sys.argv[1]
    kw = {}
    for a in sys.argv[2:]:
        k, v = a.split("=", 1)
        try:
            v = ast.literal_eval(v)
        except Exception:
            pass
        kw[k] = v
    open(out, "w").write(Gen(**kw).build())
```
